```python
import torch

def _softmax(x, axis=-1):
    return torch.softmax(x, dim=axis)
def _gelu(x):
    return torch.nn.functional.gelu(x, approximate="tanh")
def _silu(x):
    return torch.nn.functional.silu(x)
def _sigmoid(x):
    return torch.sigmoid(x)
def _layernorm(x, axis=-1, eps=1e-5):
    m = x.mean(dim=axis, keepdim=True)
    v = x.var(dim=axis, keepdim=True, unbiased=False)
    return (x - m) / torch.sqrt(v + eps)
def _scatter_add(tgt, idx, src, axis=0):
    return tgt.clone().index_add_(axis, idx, src)
def _segment_sum(src, seg, n):
    out = torch.zeros((n,) + src.shape[1:], dtype=src.dtype)
    return out.index_add_(0, seg, src)
def _pad(x, pw):
    flat = tuple(v for pair in reversed(pw) for v in pair)
    return torch.nn.functional.pad(x, flat)

kernel_name = 'standalone__paged_block_table_kv_pagedattention__sampling'

def setup_inputs():

    _w = (lambda a: (lambda t: t.to(torch.bfloat16) if t.is_floating_point() else t)(torch.as_tensor(a)))
    B, Hq, Hkv, Sq, Skv, D = 8, 32, 8, 32, 8192, 128
    bs = 16
    nbps = max(1, Skv // bs)
    num_phys = B * nbps + 4
    bt = torch.randperm(num_phys)[: B * nbps].reshape(B, nbps).to(torch.int64)
    cl = (nbps * bs - (torch.arange(1, B + 1, dtype=torch.int64) * 2654435761) % max(1, nbps * bs // 2)).to(torch.int64)
    return {
        "q": _w((lambda *s: torch.randn(*s, dtype=torch.bfloat16) * 0.8)(B, Hq, Sq, D)),
        "k_cache": _w((lambda *s: torch.randn(*s, dtype=torch.bfloat16) * 0.8)(num_phys, bs, Hkv, D)),
        "v_cache": _w((lambda *s: torch.randn(*s, dtype=torch.bfloat16) * 0.05)(num_phys, bs, Hkv, D)),
        "block_table": _w(bt),
        "context_lens": _w(cl),
    }

def reference(q, k_cache, v_cache, block_table, context_lens):
    B, Hq, Sq, D = q.shape
    bs = k_cache.shape[1]
    Hkv = k_cache.shape[2]
    nbps = block_table.shape[1]
    Skv = nbps * bs
    bt = block_table.reshape(-1)
    k = (lambda x, *d: x.permute(*d))(k_cache[bt].reshape(B, Skv, Hkv, D), 0, 2, 1, 3)
    v = (lambda x, *d: x.permute(*d))(v_cache[bt].reshape(B, Skv, Hkv, D), 0, 2, 1, 3)
    g = Hq // Hkv
    qg = q.reshape(B, Hkv, g, Sq, D)
    scores = torch.einsum("bhgqd,bhkd->bhgqk", qg, k) * (D ** -0.5)
    pos = torch.arange(Skv)
    msk = pos[None, :] < context_lens[:, None]
    scores = torch.where(msk[:, None, None, None, :], scores, -1e9)
    p = _softmax(scores, axis=-1)
    out = torch.einsum("bhgqk,bhkd->bhgqd", p, v)
    return out.reshape(B, Hq, Sq, D)
```

```python
import hz
def build(g):
    e, lab, cm, opt = g.e, g.lab, g.cm, g.opt
    globals().update({k: v for k, v in vars(g).items() if k.isupper()})
    V_L2 = 44
    TA, TB, T2 = V_T, V_T + 1, V_T + 2
    main = NAME + "_kernel"
    comb = "combine_kernel"
    g.header([f"; @launch kernel={main} grid=(256,1,1) block=(256,1,1) lds={LDS_BYTES}",
              f"; @launch kernel={comb} grid=(512,1,1) block=(256,1,1) lds=0"])
    g.kernel_begin(main)
    g.prologue()

    def kread(n):
        kb, s = n >> 3, n & 7
        r = V_KF + 4 * (n & 7)
        return f"ds_read_b128 v[{r}:{r+3}], v{V_KA+s} offset:{8192*kb}"
    def vread(n, u):
        s, db = n >> 2, n & 3
        r = V_VF + 4 * (n & 7) + 2 * u
        return f"ds_read_b64_tr_b16 v[{r}:{r+1}], v{V_VA+db} offset:{4096*s+2048*u}"
    def qk(n, S):
        kb, s = n >> 3, n & 7
        r = V_KF + 4 * (n & 7); d = S + 16 * kb
        c = "0" if s == 0 else f"v[{d}:{d+15}]"
        return f"v_mfma_f32_32x32x16_bf16 v[{d}:{d+15}], v[{r}:{r+3}], a[{A_Q+4*s}:{A_Q+4*s+3}], {c}"
    def pv(n):
        s, db = n >> 2, n & 3
        r = V_VF + 4 * (n & 7); d = V_O + 16 * db
        return f"v_mfma_f32_32x32x16_bf16 v[{d}:{d+15}], v[{r}:{r+3}], v[{V_P+4*s}:{V_P+4*s+3}], v[{d}:{d+15}]"
    def exp_stream(S):
        F = lambda x: f"v_fma_f32 v{S+x}, v{S+x}, s{S_C}, -v{V_M}"
        E = lambda x: f"v_exp_f32 v{S+x}, v{S+x}"
        A = lambda x: f"v_add_f32 v{V_L if x % 2 == 0 else V_L2}, v{V_L if x % 2 == 0 else V_L2}, v{S+x}"
        C = lambda x: f"v_cvt_pk_bf16_f32 v{V_P+x//2}, v{S+x}, v{S+x+1}"
        l = [F(0), F(1)]
        for x in range(0, 32, 2):
            l += [E(x), E(x + 1)]
            if x + 2 < 32: l += [F(x + 2), F(x + 3)]
            else: l += ["s_nop 0"]
            l += [C(x), A(x), A(x + 1)]
        return l
    def max_stream(S):
        l = [f"v_max3_f32 v{TA}, v{S}, v{S+1}, v{S+2}", f"v_max3_f32 v{TB}, v{S+16}, v{S+17}, v{S+18}"]
        for x in range(3, 15, 2):
            l += [f"v_max3_f32 v{TA}, v{TA}, v{S+x}, v{S+x+1}", f"v_max3_f32 v{TB}, v{TB}, v{S+16+x}, v{S+17+x}"]
        l += [f"v_max3_f32 v{TA}, v{TA}, v{S+15}, v{S+31}", f"v_max_f32 v{TA}, v{TA}, v{TB}",
              f"v_mov_b32 v{TB}, v{TA}", "PAD2", f"v_permlane32_swap_b32 v{TA}, v{TB}",
              f"v_max_f32 v{TA}, v{TA}, v{TB}", f"v_mul_f32 v{V_TM}, s{S_CN}, v{TA}"]
        return l
    def addr_k(): return [f"v_add_u32 v{V_KA+s}, s{S_KRD}, v{V_KB+s}" for s in range(8)]
    def addr_v(): return [f"v_add_u32 v{V_VA+q}, s{S_VRD}, v{V_VB+q}" for q in range(4)]

    def add_lgkm(lines):
        res, pend = [], []
        for l in lines:
            t = l.strip()
            if t.startswith("ds_read"):
                pend.append(hz.I(t).d)
            elif t.startswith("v_mfma"):
                ab = hz.I(t).ab
                idx = [k for k, d in enumerate(pend) if d & ab]
                if idx:
                    n = len(pend) - 1 - max(idx)
                    res.append(f"s_waitcnt lgkmcnt({min(n, 15)})")
                    pend = pend[max(idx) + 1:]
            res.append(l)
        return res

    def mask_path(tag, S, back):
        lab(f"L_mask{tag}")
        e(f"s_and_b32 s{S_T0}, s{S_LEN}, 63")
        e(f"v_lshrrev_b32 v{T2}, 5, v{V_LANE}")
        e(f"v_lshlrev_b32 v{T2}, 2, v{T2}")
        e(f"v_sub_u32 v{T2}, s{S_T0}, v{T2}")
        e(f"v_mov_b32 v{TB}, 0xff800000")
        e("s_nop 7")
        for r in range(32):
            k0 = 32 * (r >> 4) + 8 * ((r >> 2) & 3) + (r & 3)
            sp = "vcc" if r % 2 == 0 else f"s[{S_T2}:{S_T2+1}]"
            e(f"v_cmp_gt_i32 {sp}, v{T2}, {k0}" if sp != "vcc" else f"v_cmp_lt_i32 vcc, {k0}, v{T2}")
            if r % 2 == 1:
                e("s_nop 0")
                e(f"v_cndmask_b32 v{S+r-1}, v{TB}, v{S+r-1}, vcc")
                e(f"v_cndmask_b32 v{S+r}, v{TB}, v{S+r}, s[{S_T2}:{S_T2+1}]")
        e(f"s_branch {back}")

    n0 = len(g.out)
    e(f"s_mov_b32 s{S_KRD}, 0")
    e(f"s_mov_b32 s{S_VRD}, 16384")
    for x in addr_k(): e(x)
    for x in addr_v(): e(x)
    for r in range(64): e(f"v_mov_b32 v{V_O+r}, 0")
    e(f"v_mov_b32 v{V_L}, 0"); e(f"v_mov_b32 v{V_L2}, 0")
    e(f"s_waitcnt vmcnt({8*opt.D})")
    e("s_barrier")
    g.stamp(5)
    pre = [kread(n) for n in range(8)]
    for n in range(16):
        pre.append(qk(n, V_S[0]))
        if n < 8: pre.append(kread(n + 8))
    for x in add_lgkm(pre): e(x)
    e(f"s_mov_b32 s{S_KRD}, 0x8000")
    for x in addr_k(): e(x)
    e(f"s_add_u32 s{S_G}, s{S_START}, 1")
    e(f"s_cmp_eq_u32 s{S_START}, s{S_MASKG}")
    e("s_cbranch_scc1 L_maskp")
    lab("L_maskpb")
    e("s_nop 1")
    for x in max_stream(V_S[0]): e("s_nop 1" if x == "PAD2" else x)
    e(f"v_mov_b32 v{V_M}, v{V_TM}")

    bodies = []
    def body(par):
        S, SN = V_S[par], V_S[par ^ 1]
        lab(f"L_top{par}")
        b0 = len(g.out)
        e(f"s_cmp_eq_u32 s{S_G}, s{S_LIM}")
        e(f"s_cbranch_scc1 L_seg{par}")
        lab(f"L_segb{par}")
        e(f"s_waitcnt vmcnt({8*(opt.D-1)})")
        e("s_barrier")
        ex = exp_stream(S); mx = max_stream(SN)
        dm = g.dma("V") + g.dma("K")
        def dmai(k):
            l = [f"s_waitcnt vmcnt({opt.cap-1})"] if opt.cap else []
            if k == 4: l = [f"s_mov_b32 m0, s{S_KWR}"] + (l or ["s_nop 0"])
            return l + [dm[k]]
        seq = []
        hd = g.dma_head()
        seq += [kread(0), kread(1)] + hd[:4] + [kread(2), kread(3)] + hd[4:] + dmai(0)
        for n in range(4, 8):
            seq += [kread(n)] + ex[:2]; ex = ex[2:]
        def take(k):
            nonlocal ex
            t, ex = ex[:k], ex[k:]
            return t
        dgap = {3: 1, 7: 2, 11: 3, 15: 4, 19: 5, 23: 6, 27: 7}
        tail = g.ring_adv(S_KRD, 0) + addr_k()
        for n in range(32):
            seq.append(qk(n, SN) if n < 16 else pv(n - 16))
            if n < 8: seq += take(2) + [kread(n + 8)] + take(3)
            elif n < 24: seq += take(1) + [vread(n - 8, 0)] + take(2) + [vread(n - 8, 1)] + take(1)
            if n == 23:
                seq += take(99)
                seq += [f"s_cmp_eq_u32 s{S_G}, s{S_MASKG}", f"s_cbranch_scc1 L_mask{par}", f"L_maskb{par}:"]
            if n in dgap: seq += dmai(dgap[n])
            if 24 <= n < 28:
                seq += mx[:4]; mx = mx[4:]
                k = 3
                seq += tail[:k]; tail = tail[k:]
            if n == 28:
                seq += mx[:1] + g.ring_adv(S_VRD, 0); mx = mx[2:]
                seq += mx[:3]; mx = []
            if n == 29:
                seq += [f"v_sub_f32 v{TA}, v{V_TM}, v{V_M}"] + addr_v() + [f"v_cmp_lt_f32 vcc, s{S_THR}, v{TA}"]
            if n == 30:
                seq += g.dma_tail()
        assert not ex and not mx and not tail
        for x in add_lgkm(seq):
            if x.endswith(":"): lab(x[:-1])
            else: e(x)
        e(f"s_add_u32 s{S_I}, s{S_I}, 1")
        e(f"s_add_u32 s{S_G}, s{S_G}, 1")
        e(f"s_mov_b32 s{S_T2}, {par ^ 1}")
        e(f"s_cmp_lg_u32 s{S_FLUSH}, 0")
        e("s_cbranch_scc1 L_flush")
        e("s_cbranch_vccnz L_resc")
        if par == 1: e("s_branch L_top0")
        bodies.append(g.out[b0:])
    body(0); body(1)
    hz.check(g.out[n0:], "pre+b0+b1"); hz.check(bodies[1] + bodies[0], "b1+b0")

    def back():
        e(f"s_cmp_eq_u32 s{S_T2}, 0")
        e("s_cbranch_scc1 L_top0")
        e("s_branch L_top1")
    r0 = len(g.out)
    lab("L_resc")
    e(f"v_max_f32 v{TA}, v{V_M}, v{V_TM}")
    e(f"v_sub_f32 v{TB}, v{V_M}, v{TA}")
    e(f"v_exp_f32 v{TB}, v{TB}")
    e(f"v_mov_b32 v{V_M}, v{TA}")
    e("s_nop 11")
    e(f"v_mul_f32 v{V_L}, v{V_L}, v{TB}")
    e(f"v_mul_f32 v{V_L2}, v{V_L2}, v{TB}")
    for r in range(64): e(f"v_mul_f32 v{V_O+r}, v{V_O+r}, v{TB}")
    back()
    lab("L_flush")
    e(f"v_add_f32 v{TA}, v{V_L}, v{V_L2}")
    e(f"s_mul_i32 s{S_T0}, s{S_H}, {SLOT_STRIDE}")
    e(f"v_mov_b32 v{TB}, v{TA}")
    e(f"s_add_u32 s{S_T0}, s{S_T0}, s{S_J}")
    e(f"s_add_u32 s{S_T0}, s{S_T0}, s{S_BPV}")
    e(f"v_permlane32_swap_b32 v{TA}, v{TB}")
    e(f"v_add_f32 v{TA}, v{TA}, v{TB}")
    e(f"v_rcp_f32 v{TB}, v{TA}")
    e(f"v_log_f32 v{T2}, v{TA}")
    e(f"s_lshl_b32 s{S_T1}, s{S_T0}, 9")
    e(f"s_add_u32 s{S_T1}, s{S_T1}, {WS_L_OFF}")
    e(f"v_add_f32 v{T2}, v{T2}, v{V_M}")
    e(f"v_and_b32 v{TA}, 31, v{V_LANE}")
    e(f"s_lshl_b32 s{S_T3}, s{S_W}, 7")
    e(f"v_lshl_add_u32 v{TA}, v{TA}, 2, s{S_T3}")
    e(f"s_lshl_b32 s{S_T0}, s{S_T0}, 15")
    e(f"buffer_store_dword v{T2}, v{TA}, s[{R_WS}:{R_WS+3}], s{S_T1} offen{opt.stpol.replace('_',' ')}")
    e(f"s_add_u32 s{S_T1}, s{S_T0}, 4096")
    for gi in range(8):
        o = V_O + 8 * gi; x = V_KF + 4 * gi
        for r in range(8): e(f"v_mul_f32 v{o+r}, v{o+r}, v{TB}")
        for r in range(4): e(f"v_cvt_pk_bf16_f32 v{x+r}, v{o+2*r}, v{o+2*r+1}")
        e("s_nop 0")
        e(f"v_permlane32_swap_b32 v{x}, v{x+2}")
        e(f"v_permlane32_swap_b32 v{x+1}, v{x+3}")
        e(f"buffer_store_dwordx4 v[{x}:{x+3}], v{V_ST}, s[{R_WS}:{R_WS+3}], s{S_T0 if gi < 4 else S_T1} offen offset:{1024*(gi&3)}{opt.stpol.replace('_',' ')}")
    e(f"s_cmp_ge_u32 s{S_I}, s{S_N}")
    e("s_cbranch_scc1 L_done")
    for r in range(64): e(f"v_mov_b32 v{V_O+r}, 0")
    e(f"v_mov_b32 v{V_L}, 0"); e(f"v_mov_b32 v{V_L2}, 0")
    e(f"v_mov_b32 v{V_M}, v{V_TM}")
    e(f"s_mov_b32 s{S_C}, s{S_CN}")
    e(f"s_mov_b32 s{S_FLUSH}, 0")
    back()
    lab("L_done")
    g.write_stamps()
    lab("L_exit")
    e("s_endpgm")
    for par in range(2):
        lab(f"L_seg{par}")
        e(f"s_mov_b32 s{S_T2}, {par}")
        if par == 0: e("s_branch L_seg")
    lab("L_seg")
    e(f"s_mov_b32 s{S_BPV}, s{S_B}")
    e(f"s_mov_b32 s{S_FLUSH}, 1")
    e(f"s_cmp_eq_u32 s{S_G}, s{S_END}")
    e("s_cbranch_scc1 L_segr")
    e(f"s_sub_i32 s{S_T0}, s{S_I}, s{S_QAGE}")
    e(f"s_cmp_gt_i32 s{S_T0}, {opt.D+1}")
    e("s_cbranch_scc1 L_segq")
    e("s_waitcnt vmcnt(0)")
    lab("L_segq")
    for r in range(32): e(f"v_accvgpr_mov_b32 a{A_Q+r}, a{A_QN+r}")
    e(f"s_add_u32 s{S_B}, s{S_B}, 1")
    g.seg_params(S_CN)
    e(f"s_cmp_lt_u32 s{S_SEND}, s{S_END}")
    e("s_cbranch_scc0 L_segr")
    e(f"s_add_u32 s{S_T1}, s{S_B}, 1")
    g.q_loads(A_QN, S_T1)
    e(f"s_mov_b32 s{S_QAGE}, s{S_I}")
    lab("L_segr")
    e(f"s_cmp_eq_u32 s{S_T2}, 0")
    e("s_cbranch_scc1 L_segb0")
    e("s_branch L_segb1")
    mask_path("p", V_S[0], "L_maskpb")
    mask_path("0", V_S[1], "L_maskb0")
    mask_path("1", V_S[0], "L_maskb1")
    hz.check(g.out[r0:], "rare")

    c0 = len(g.out)
    g.kernel_begin(comb)
    G = 8
    e("s_cmp_ge_u32 s2, 512")
    e("s_cbranch_scc1 C_exit")
    e("s_load_dwordx8 s[12:19], s[0:1], 32")
    e(f"s_lshr_b32 s{S_B}, s2, 6")
    e(f"s_bfe_u32 s{S_H}, s2, 0x30003")
    e(f"s_and_b32 s{S_W}, s2, 7")
    e("v_and_b32 v1, 63, v0")
    e("v_and_b32 v2, 31, v0")
    e(f"s_lshl_b32 s{S_T0}, s{S_W}, 12")
    e(f"v_lshl_add_u32 v3, v0, 4, s{S_T0}")
    e(f"s_lshr_b32 s{S_T1}, s{S_W}, 1")
    e(f"s_lshl_b32 s{S_T0}, s{S_T1}, 7")
    e(f"v_lshl_add_u32 v4, v2, 2, s{S_T0}")
    e("s_waitcnt lgkmcnt(0)")
    e(f"s_load_dwordx8 s[{S_CLV}:{S_CLV+7}], s[{S_CL}:{S_CL+1}], 0")
    g.srd(R_WS, S_WS, WS_USED); g.srd(R_Q, S_OUT, Q_BYTES)
    cm("output offset")
    e(f"s_lshl_b32 s{S_T0}, s{S_B}, 3")
    e(f"s_add_u32 s{S_T0}, s{S_T0}, s{S_H}")
    e(f"s_lshl_b32 s{S_T0}, s{S_T0}, 2")
    e(f"s_add_u32 s{S_T0}, s{S_T0}, s{S_T1}")
    e(f"s_lshl_b32 s{S_T0}, s{S_T0}, 13")
    e(f"s_and_b32 s{S_T1}, s{S_W}, 1")
    e(f"s_lshl_b32 s{S_T1}, s{S_T1}, 7")
    e(f"s_add_u32 s{S_T0}, s{S_T0}, s{S_T1}")
    e(f"v_lshl_add_u32 v5, v2, 8, s{S_T0}")
    e("v_lshrrev_b32 v6, 5, v0")
    e("v_lshl_add_u32 v5, v6, 4, v5")
    e("v_mov_b32 v8, 0xff800000")
    e("v_mov_b32 v9, 0")
    for r in range(8): e(f"v_mov_b32 v{10+r}, 0")
    e("s_waitcnt lgkmcnt(0)")
    g.partition(5)
    e(f"s_mov_b32 s{S_START}, 0"); e(f"s_mov_b32 s{S_END}, s{S_P+1}")
    for b in range(1, 8):
        e(f"s_cmp_eq_u32 s{S_B}, {b}")
        e(f"s_cselect_b32 s{S_START}, s{S_P+b}, s{S_START}")
        e(f"s_cselect_b32 s{S_END}, s{S_P+b+1}, s{S_END}")
    e(f"v_mul_u32_u24 v6, s{S_P+8}, v1")
    e(f"v_add_u32 v7, s{S_P+8}, v6")
    e("v_lshrrev_b32 v6, 5, v6")
    e("v_lshrrev_b32 v7, 5, v7")
    e(f"v_max_u32 v6, s{S_START}, v6")
    e(f"v_min_u32 v7, s{S_END}, v7")
    e("v_cmp_lt_u32 vcc, v6, v7")
    e(f"s_mul_i32 s{S_J}, s{S_H}, {SLOT_STRIDE}")
    e(f"s_add_u32 s{S_J}, s{S_J}, s{S_B}")
    e("s_nop 2")
    e(f"s_mov_b32 s{S_G}, vcc_lo")
    lab("C_group")
    e(f"s_mov_b32 s{S_N}, 0")
    for k in range(G):
        e(f"s_ff1_i32_b32 s{S_T0}, s{S_G}")
        e(f"s_bitset0_b32 s{S_G}, s{S_T0}")
        e(f"s_add_u32 s{S_T0}, s{S_T0}, s{S_J}")
        e(f"s_lshl_b32 s{S_T1}, s{S_T0}, 9")
        e(f"s_add_u32 s{S_T1}, s{S_T1}, {WS_L_OFF}")
        e(f"s_lshl_b32 s{S_T0}, s{S_T0}, 15")
        e(f"buffer_load_dword v{20+k}, v4, s[{R_WS}:{R_WS+3}], s{S_T1} offen")
        e(f"buffer_load_dwordx4 v[{28+4*k}:{31+4*k}], v3, s[{R_WS}:{R_WS+3}], s{S_T0} offen")
        e(f"s_add_u32 s{S_N}, s{S_N}, 1")
        if k < G - 1:
            e(f"s_cmp_eq_u32 s{S_G}, 0")
            e("s_cbranch_scc1 C_issued")
    lab("C_issued")
    e("s_waitcnt vmcnt(0)")
    for k in range(G):
        e(f"v_max_f32 v6, v8, v{20+k}")
        e("v_sub_f32 v7, v8, v6")
        e(f"v_sub_f32 v18, v{20+k}, v6")
        e("v_exp_f32 v7, v7")
        e("v_exp_f32 v18, v18")
        e("v_mov_b32 v8, v6")
        e("v_fma_f32 v9, v9, v7, v18")
        for r in range(4):
            e(f"v_lshlrev_b32 v6, 16, v{28+4*k+r}")
            e(f"v_and_b32 v19, 0xffff0000, v{28+4*k+r}")
            e("v_mul_f32 v6, v6, v18")
            e("v_mul_f32 v19, v19, v18")
            e(f"v_fma_f32 v{10+2*r}, v{10+2*r}, v7, v6")
            e(f"v_fma_f32 v{11+2*r}, v{11+2*r}, v7, v19")
        if k < G - 1:
            e(f"s_cmp_eq_u32 s{S_N}, {k+1}")
            e("s_cbranch_scc1 C_acc")
    lab("C_acc")
    e(f"s_cmp_lg_u32 s{S_G}, 0")
    e("s_cbranch_scc1 C_group")
    e("v_rcp_f32 v9, v9")
    e("s_nop 0")
    for r in range(8): e(f"v_mul_f32 v{10+r}, v{10+r}, v9")
    for r in range(4): e(f"v_cvt_pk_bf16_f32 v{20+r}, v{10+2*r}, v{11+2*r}")
    e(f"buffer_store_dwordx4 v[20:23], v5, s[{R_Q}:{R_Q+3}], 0 offen")
    lab("C_exit")
    e("s_endpgm")
    hz.check([l for l in g.out[c0:] if l.startswith("    ")], "combine")
    g.kdesc(main, 320, 256)
    g.kdesc(comb, 64, 64)
```

```python
import re
TRANS = ("v_exp_f32", "v_log_f32", "v_rcp_f32", "v_rsq_f32", "v_sqrt_f32")
def regs(tok):
    tok = tok.strip().lstrip("-")
    m = re.fullmatch(r"([vas])\[(\d+):(\d+)\]", tok)
    if m: return {(m.group(1), i) for i in range(int(m.group(2)), int(m.group(3)) + 1)}
    m = re.fullmatch(r"([vas])(\d+)", tok)
    if m: return {(m.group(1), int(m.group(2)))}
    if tok == "vcc": return {("s", "vcc")}
    if tok == "m0": return {("s", "m0")}
    if tok == "exec": return {("s", "exec")}
    return set()
class I:
    def __init__(s, text):
        s.text = text; p = text.split(None, 1); s.op = p[0]
        ops = [x.strip() for x in (p[1] if len(p) > 1 else "").split(",")]
        if ops: ops[-1] = ops[-1].split()[0] if ops[-1] else ""
        s.ops = ops; op = s.op
        s.states = int(ops[0]) + 1 if op == "s_nop" else 1
        s.mfma = op.startswith("v_mfma"); s.valu = op.startswith("v_") and not s.mfma
        s.vmem = op.startswith("buffer_") or op.startswith("global_"); s.ds = op.startswith("ds_")
        s.salu = op.startswith("s_"); s.lds = s.vmem and text.rstrip().endswith("lds")
        s.store = s.vmem and "store" in op
        R = [regs(o) for o in ops]
        s.d = set(); s.r = set(); s.c = set()
        if s.mfma: s.d = R[0]; s.ab = R[1] | R[2]; s.c = R[3]; s.r = s.ab | s.c
        elif op.startswith("v_permlane32_swap"): s.d = R[0] | R[1]; s.r = set(s.d)
        elif op == "v_writelane_b32": s.d = R[0]; s.r = R[0] | R[1] | R[2]
        elif s.valu:
            s.d = R[0]; s.r = set().union(*R[1:]) if len(R) > 1 else set()
            if op.startswith("v_fmac"): s.r |= R[0]
        elif s.ds:
            if "read" in op: s.d = R[0]; s.r = R[1]
            else: s.r = set().union(*R)
        elif s.vmem:
            if s.store or s.lds: s.r = set().union(*R)
            else: s.d = R[0]; s.r = set().union(*R[1:])
            if s.store: s.data = R[0]
        elif s.salu and not op.startswith(("s_cmp", "s_cbranch", "s_branch", "s_waitcnt", "s_nop", "s_barrier", "s_endpgm", "s_setprio")):
            s.d = R[0]; s.r = set().union(*R[1:]) if len(R) > 1 else set()
def need(p, c):
    v = lambda x: {r for r in x if r[0] != "s"}
    sg = lambda x: {r for r in x if r[0] == "s"}
    n = 0
    if p.mfma:
        if c.mfma:
            if p.d & c.ab: n = max(n, 12)
            if p.d & c.c and p.d != c.c: n = max(n, 10)
            if p.d & c.d and p.d != c.c: n = max(n, 10)
        elif (c.valu or c.vmem or c.ds) and p.d & (c.r | c.d): n = max(n, 12)
        if c.valu and p.c & c.d: n = max(n, 7)
    if p.valu:
        if c.mfma and v(p.d) & c.r: n = max(n, 2)
        if p.op in TRANS and c.valu and c.op not in TRANS and p.d & c.r: n = max(n, 1)
        if c.op.startswith("v_permlane") and v(p.d) & c.r: n = max(n, 2)
        if c.op in ("v_readlane_b32", "v_readfirstlane_b32") and v(p.d) & c.r: n = max(n, 1)
        if sg(p.d):
            if c.valu and sg(p.d) & c.r: n = max(n, 4 if c.op in ("v_readlane_b32", "v_writelane_b32") else 2)
            if c.vmem and sg(p.d) & c.r: n = max(n, 5)
    if p.salu and ("s", "m0") in p.d and c.lds: n = max(n, 1)
    if p.store and "x4" in p.op and (c.valu or c.ds or c.vmem) and p.data & c.d: n = max(n, 2)
    return n
def check(lines, name=""):
    ins = [I(l.strip()) for l in lines if l.strip() and not l.strip().startswith(";") and not l.strip().endswith(":")]
    bad = 0
    for j, c in enumerate(ins):
        dist = 0
        for k in range(j - 1, max(-1, j - 14), -1):
            p = ins[k]; n = need(p, c)
            if n > dist:
                print(f"HAZARD[{name}] need {n} have {dist}: {p.text}  ->  {c.text}"); bad += 1
            dist += p.states
            if dist >= 12: break
    return bad
```

```python
import sys, re

NAME = "standalone__paged_block_table_kv_pagedattention__sampling"
KV_BYTES = 4100 * 32768
Q_BYTES = 8 * 32 * 32 * 128 * 2
SLOT_STRIDE = 40
WS_L_OFF = 8 * SLOT_STRIDE * 32768
WS_USED = WS_L_OFF + 8 * SLOT_STRIDE * 512
STAMP_OFF = 0x2000000

class Opt:
    mode = "full"; mapping = 0; nt = 1; stamps = 0; thr = 8.0; stpol = ""; hmask = 255; serial = 0; D = 2; cap = 6
opt = Opt()
for a in sys.argv[2:]:
    k, v = a.split("=")
    cur = getattr(opt, k)
    setattr(opt, k, type(cur)(v))

out = []
def e(s): out.append("    " + s)
def lab(s): out.append(s + ":")
def cm(s): out.append("    ; " + s)

S_Q, S_K, S_V, S_BT, S_CL, S_OUT, S_DBG, S_WS = 4, 6, 8, 10, 12, 14, 16, 18
R_K, R_V, R_Q, R_WS, R_BT = 20, 24, 28, 32, 36
S_CLV = 40
S_T = 48
S_P = 56
S_H, S_J, S_START, S_END, S_W = 65, 66, 67, 68, 69
S_B, S_SEND, S_LEN, S_C, S_CN = 70, 71, 72, 73, 74
S_I, S_N, S_G = 75, 76, 77
S_KRD, S_VRD = 78, 79
S_KWR, S_VWR = 80, 81
S_SOK, S_SOV = 82, 83
S_FLUSH, S_QAGE, S_BPV = 84, 85, 86
S_T0, S_T1, S_T2, S_T3 = 88, 89, 90, 91
S_THR, S_IDX = 92, 93
S_TS = 94
V_LANE, V_BT, V_CL = 1, 2, 3
V_OK, V_OV = 4, 8
V_KB, V_VB = 12, 20
V_KA, V_VA = 24, 32
V_M, V_L, V_TM = 36, 37, 38
V_T = 39
V_QO, V_ST = 46, 47
V_P = 48
V_S = [64, 96]
V_O = 128
V_KF = 192
V_VF = 224
A_Q, A_QN = 0, 32
NP = opt.D + 1
RING = NP * 32768
BT_OFF = RING
LDS_BYTES = RING + 16384
S_LIM, S_MASKG = 87, 96
NT = {0:"",1:" nt",2:" sc1",3:" sc0 sc1",4:" sc1 nt",5:" sc0 sc1 nt",6:" sc0 nt"}[opt.nt]

def srd(r, p, nbytes):
    e(f"s_mov_b32 s{r}, s{p}")
    e(f"s_and_b32 s{r+1}, s{p+1}, 0xffff")
    e(f"s_mov_b32 s{r+2}, {nbytes}")
    e(f"s_mov_b32 s{r+3}, 0x00020000")

def partition(nwg_shift):
    for b in range(8):
        e(f"s_cmp_lt_i32 s{S_CLV+b}, 1")
        e(f"s_cselect_b32 s{S_T0}, 0x2000, s{S_CLV+b}")
        e(f"s_min_u32 s{S_T0}, s{S_T0}, 0x2000")
        e(f"s_add_u32 s{S_T0}, s{S_T0}, 63")
        e(f"s_lshr_b32 s{S_T+b}, s{S_T0}, 6")
    e(f"s_mov_b32 s{S_P}, 0")
    for b in range(8):
        e(f"s_add_u32 s{S_P+b+1}, s{S_P+b}, s{S_T+b}")

def seg_params(cdst):
    e(f"v_readlane_b32 s{S_T0}, v{V_CL}, s{S_B}")
    e("s_nop 3")
    e(f"s_cmp_lt_i32 s{S_T0}, 1")
    e(f"s_cselect_b32 s{cdst}, 0, 0x3e0293ee")
    e(f"s_cselect_b32 s{S_T0}, 0x2000, s{S_T0}")
    e(f"s_min_u32 s{S_LEN}, s{S_T0}, 0x2000")
    e(f"s_add_u32 s{S_T0}, s{S_LEN}, 63")
    e(f"s_lshr_b32 s{S_T0}, s{S_T0}, 6")
    e(f"s_add_u32 s{S_SEND}, s{S_SEND}, s{S_T0}")
    e(f"s_sub_u32 s{S_T0}, s{S_SEND}, 1")
    e(f"s_and_b32 s{S_T1}, s{S_LEN}, 63")
    e(f"s_cselect_b32 s{S_MASKG}, s{S_T0}, -1")
    e(f"s_min_u32 s{S_LIM}, s{S_SEND}, s{S_END}")

def q_loads(areg, sb):
    e(f"s_lshl_b32 s{S_T0}, s{sb}, 3")
    e(f"s_add_u32 s{S_T0}, s{S_T0}, s{S_H}")
    e(f"s_lshl_b32 s{S_T0}, s{S_T0}, 15")
    for s in range(8):
        e(f"buffer_load_dwordx4 a[{areg+4*s}:{areg+4*s+3}], v{V_QO}, s[{R_Q}:{R_Q+3}], s{S_T0} offen offset:{32*s}")

def dma(kind):
    r, so, vo = (R_K, S_SOK, V_OK) if kind == "K" else (R_V, S_SOV, V_OV)
    l = []
    for t in range(4):
        l.append(f"buffer_load_dwordx4 v{vo+t}, s[{r}:{r+3}], s{so} offen offset:{1024*t}{NT} lds")
        if opt.serial: l.append(f"s_waitcnt vmcnt({opt.serial-1})")
    return l

V_STAMP = 45
def stamp(k):
    if opt.stamps:
        e(f"s_memrealtime s[{S_TS}:{S_TS+1}]")
        e("s_waitcnt lgkmcnt(0)")
        e(f"v_writelane_b32 v{V_STAMP}, s{S_TS}, {k}")

def prologue():
    e("s_cmp_ge_u32 s2, 256")
    e("s_cbranch_scc1 L_exit")
    stamp(0)
    e("s_load_dwordx16 s[4:19], s[0:1], 0")
    e(f"v_and_b32 v{V_LANE}, 63, v0")
    e(f"v_lshrrev_b32 v{V_T}, 6, v0")
    if opt.mapping == 0:
        e(f"s_and_b32 s{S_H}, s2, 7"); e(f"s_lshr_b32 s{S_J}, s2, 3")
    elif opt.mapping == 1:
        e(f"s_lshr_b32 s{S_H}, s2, 5"); e(f"s_and_b32 s{S_J}, s2, 31")
    else:
        e(f"s_lshr_b32 s{S_H}, s2, 3"); e(f"s_and_b32 s{S_H}, s{S_H}, 7")
        e(f"s_lshr_b32 s{S_J}, s2, 6"); e(f"s_lshl_b32 s{S_J}, s{S_J}, 3")
        e(f"s_and_b32 s{S_T0}, s2, 7"); e(f"s_or_b32 s{S_J}, s{S_J}, s{S_T0}")
    if opt.hmask != 255:
        e(f"s_lshr_b32 s{S_T0}, {opt.hmask}, s{S_H}")
        e(f"s_and_b32 s{S_T0}, s{S_T0}, 1")
        e("s_cbranch_scc0 L_exit")
    e(f"v_readfirstlane_b32 s{S_W}, v{V_T}")
    e(f"v_lshlrev_b32 v{V_T+1}, 4, v0")
    e("s_waitcnt lgkmcnt(0)")
    stamp(1)
    e(f"s_load_dwordx8 s[{S_CLV}:{S_CLV+7}], s[{S_CL}:{S_CL+1}], 0")
    srd(R_BT, S_BT, 16384)
    cm("stage the whole block table in the last ring slot")
    e(f"s_lshl_b32 s{S_T0}, s{S_W}, 12")
    e(f"s_add_u32 m0, s{S_T0}, {BT_OFF}")
    e(f"v_lshlrev_b32 v{V_T+1}, 4, v{V_LANE}")
    for t in range(4):
        e(f"buffer_load_dwordx4 v{V_T+1}, s[{R_BT}:{R_BT+3}], s{S_T0} offen offset:{1024*t} lds")
    srd(R_K, S_K, KV_BYTES); srd(R_V, S_V, KV_BYTES); srd(R_Q, S_Q, Q_BYTES); srd(R_WS, S_WS, WS_USED if not opt.stamps else STAMP_OFF + 65536)
    cm("per-lane DMA source offsets")
    T = V_T
    e(f"v_lshrrev_b32 v{T}, 4, v{V_LANE}")
    e(f"v_and_b32 v{T+1}, 15, v{V_LANE}")
    e(f"v_lshlrev_b32 v{T+2}, 2, v{T}")
    e(f"v_xor_b32 v{T+2}, v{T+2}, v{T+1}")
    e(f"v_lshlrev_b32 v{T+2}, 4, v{T+2}")
    e(f"v_lshl_add_u32 v{T+2}, v{T}, 11, v{T+2}")
    for t in range(4):
        e(f"v_add_u32 v{V_OV+t}, {t*7168}, v{T+2}")
        e(f"v_add_u32 v{T+3}, {4*t}, v{T}")
        e(f"v_xor_b32 v{T+3}, v{T+3}, v{T+1}")
        e(f"v_lshlrev_b32 v{T+3}, 4, v{T+3}")
        e(f"v_lshl_add_u32 v{T+3}, v{T}, 11, v{T+3}")
        e(f"v_add_u32 v{V_OK+t}, {t*7168}, v{T+3}")
    cm("per-lane LDS read bases")
    e(f"v_lshrrev_b32 v{T}, 5, v{V_LANE}")
    e(f"v_and_b32 v{T+2}, 31, v{V_LANE}")
    e(f"v_xor_b32 v{T+3}, v{T}, v{T+1}")
    e(f"v_lshlrev_b32 v{T+3}, 4, v{T+3}")
    e(f"v_lshl_add_u32 v{T+3}, v{T+2}, 8, v{T+3}")
    for s in range(8):
        e(f"v_xor_b32 v{V_KB+s}, {32*s}, v{T+3}")
    e(f"v_lshlrev_b32 v{V_QO}, 4, v{T}")
    e(f"v_lshl_add_u32 v{V_QO}, v{T+2}, 8, v{V_QO}")
    e(f"s_lshl_b32 s{S_T0}, s{S_W}, 13")
    e(f"v_add_u32 v{V_QO}, s{S_T0}, v{V_QO}")
    e(f"v_lshl_add_u32 v{V_ST}, v{V_LANE}, 4, s{S_T0}")
    e(f"v_bfe_u32 v{T+2}, v{V_LANE}, 2, 2")
    e(f"v_lshl_add_u32 v{T+3}, v{T}, 2, v{T+2}")
    e(f"v_lshlrev_b32 v{T+3}, 8, v{T+3}")
    e(f"v_lshl_add_u32 v{T+3}, v{T+2}, 6, v{T+3}")
    e(f"v_bfe_u32 v{T+4}, v{V_LANE}, 4, 1")
    e(f"v_lshl_add_u32 v{T+3}, v{T+4}, 5, v{T+3}")
    e(f"v_and_b32 v{T+4}, 3, v{V_LANE}")
    e(f"v_lshl_add_u32 v{T+3}, v{T+4}, 3, v{T+3}")
    for q in range(4):
        e(f"v_xor_b32 v{V_VB+q}, {64*q}, v{T+3}")
    e("s_waitcnt lgkmcnt(0)")
    stamp(2)
    partition(5)
    e(f"s_mul_i32 s{S_START}, s{S_J}, s{S_P+8}")
    e(f"s_add_u32 s{S_END}, s{S_START}, s{S_P+8}")
    e(f"s_lshr_b32 s{S_START}, s{S_START}, 5")
    e(f"s_lshr_b32 s{S_END}, s{S_END}, 5")
    e(f"s_sub_u32 s{S_N}, s{S_END}, s{S_START}")
    e(f"s_cmp_eq_u32 s{S_N}, 0")
    e("s_cbranch_scc1 L_exit")
    for b in range(8):
        e(f"v_writelane_b32 v{V_CL}, s{S_CLV+b}, {b}")
    e(f"s_mov_b32 s{S_B}, 0")
    e(f"s_mov_b32 s{S_SEND}, 0")
    for b in range(1, 8):
        e(f"s_cmp_le_u32 s{S_P+b}, s{S_START}")
        e(f"s_cselect_b32 s{S_B}, {b}, s{S_B}")
        e(f"s_cselect_b32 s{S_SEND}, s{S_P+b}, s{S_SEND}")
    q_loads(A_Q, S_B)
    seg_params(S_C)
    e(f"s_mov_b32 s{S_CN}, s{S_C}")
    e(f"s_cmp_lt_u32 s{S_SEND}, s{S_END}")
    e("s_cbranch_scc0 L_noqn")
    e(f"s_add_u32 s{S_T1}, s{S_B}, 1")
    q_loads(A_QN, S_T1)
    lab("L_noqn")
    cm("lane i: block-table index of (tile start+i, block w)")
    e(f"v_add_u32 v{T}, s{S_START}, v{V_LANE}")
    e(f"s_sub_u32 s{S_T0}, s{S_END}, 1")
    e(f"v_min_u32 v{T}, s{S_T0}, v{T}")
    e(f"v_lshl_add_u32 v{T+1}, v{T}, 2, s{S_W}")
    for b in range(7):
        e(f"s_lshl_b32 s{S_T0}, s{S_T+b}, 2")
        e(f"s_sub_u32 s{S_T0}, 512, s{S_T0}")
        e(f"v_cmp_le_u32 vcc, s{S_P+b+1}, v{T}")
        e(f"v_mov_b32 v{T+2}, s{S_T0}")
        e("s_nop 0")
        e(f"v_cndmask_b32 v{T+2}, 0, v{T+2}, vcc")
        e(f"v_add_u32 v{T+1}, v{T+1}, v{T+2}")
    e(f"v_lshlrev_b32 v{T+1}, 2, v{T+1}")
    e(f"v_add_u32 v{T+1}, {BT_OFF}, v{T+1}")
    e(f"s_cmp_lt_u32 s{S_SEND}, s{S_END}")
    e("s_cbranch_scc1 L_w16")
    e("s_waitcnt vmcnt(8)")
    e("s_branch L_wd")
    lab("L_w16")
    e("s_waitcnt vmcnt(16)")
    lab("L_wd")
    e("s_barrier")
    stamp(3)
    e(f"ds_read_b32 v{V_BT}, v{T+1}")
    e(f"s_lshl_b32 s{S_T0}, s{S_H}, 8")
    e(f"s_lshl_b32 s{S_KWR}, s{S_W}, 12")
    e("s_waitcnt lgkmcnt(0)")
    e(f"v_lshl_add_u32 v{V_BT}, v{V_BT}, 15, s{S_T0}")
    e("s_nop 0")
    cm("initial ring fill: K0 | K1 V0 | K2 V1 ...; tiles past the range read through a zero-size descriptor")
    for i in range(opt.D + 1):
        if i:
            e(f"s_mov_b32 s{S_SOV}, s{S_SOK}")
            e(f"s_mov_b32 s{R_V+2}, s{R_K+2}")
        e(f"v_readlane_b32 s{S_SOK}, v{V_BT}, {i}")
        e(f"s_cmp_gt_u32 s{S_N}, {i}")
        e(f"s_cselect_b32 s{R_K+2}, {KV_BYTES}, 0")
        e(f"s_add_u32 m0, s{S_KWR}, {i*32768}")
        e("s_nop 1")
        for d in dma("K"): e(d)
        if i:
            e(f"s_add_u32 m0, s{S_KWR}, {(i-1)*32768+16384}")
            e("s_nop 0")
            for d in dma("V"): e(d)
    stamp(4)
    e(f"s_add_u32 s{S_VWR}, s{S_KWR}, {opt.D*32768+16384}")
    e(f"s_mov_b32 s{S_I}, 0")
    e(f"s_mov_b32 s{S_IDX}, {opt.D+1}")
    e(f"s_mov_b32 s{S_QAGE}, -100")
    e(f"s_mov_b32 s{S_FLUSH}, 0")
    e(f"s_mov_b32 s{S_THR}, {hex(f2u(opt.thr))}")

import struct
def f2u(f): return struct.unpack("<I", struct.pack("<f", f))[0]

def ring_adv(reg, lo):
    return [f"s_add_u32 s{reg}, s{reg}, 0x8000",
            f"s_sub_u32 s{S_T3}, s{reg}, {RING}",
            f"s_cselect_b32 s{reg}, s{reg}, s{S_T3}"]

def dma_head():
    return [f"s_mov_b32 s{S_SOV}, s{S_SOK}", f"s_mov_b32 s{R_V+2}, s{R_K+2}",
            f"v_readlane_b32 s{S_SOK}, v{V_BT}, s{S_IDX}",
            f"s_mov_b32 m0, s{S_VWR}",
            f"s_cmp_lt_u32 s{S_IDX}, s{S_N}",
            f"s_cselect_b32 s{R_K+2}, {KV_BYTES}, 0"]

def dma_tail():
    return ring_adv(S_KWR, 0) + ring_adv(S_VWR, 0) + [f"s_add_u32 s{S_IDX}, s{S_IDX}, 1"]

def write_stamps():
    if not opt.stamps: return
    stamp(6)
    e(f"s_getreg_b32 s{S_T1}, hwreg(HW_REG_XCC_ID)")
    e(f"v_writelane_b32 v{V_STAMP}, s{S_T1}, 7")
    e(f"s_lshl_b32 s{S_T0}, s2, 2")
    e(f"s_add_u32 s{S_T0}, s{S_T0}, s{S_W}")
    e(f"s_lshl_b32 s{S_T0}, s{S_T0}, 5")
    e(f"s_add_u32 s{S_T0}, s{S_T0}, {STAMP_OFF}")
    e(f"v_lshlrev_b32 v{V_T+1}, 2, v{V_LANE}")
    e("s_mov_b64 exec, 0xff")
    e(f"buffer_store_dword v{V_STAMP}, v{V_T+1}, s[{R_WS}:{R_WS+3}], s{S_T0} offen")
    e("s_mov_b64 exec, -1")

def stream_loop():
    e(f"s_waitcnt vmcnt({8*opt.D})")
    e("s_barrier")
    stamp(5)
    lab("L_loop")
    e(f"s_waitcnt vmcnt({8*(opt.D-1)})")
    e("s_barrier")
    for x in dma_head(): e(x)
    for d in dma("V"): e(d)
    e(f"s_mov_b32 m0, s{S_KWR}")
    e("s_nop 0")
    for d in dma("K"): e(d)
    for x in dma_tail(): e(x)
    e(f"s_add_u32 s{S_I}, s{S_I}, 1")
    e(f"s_cmp_lt_u32 s{S_I}, s{S_N}")
    e("s_cbranch_scc1 L_loop")
    write_stamps()
    e("s_endpgm")

def header(launches):
    src = open(f"cdna_kernels/{NAME}.s.ref").read().split("\n")
    hdr = [l for l in src if l.startswith(";") and "@launch" not in l]
    out.extend(hdr)
    out.extend(launches)
    out.append('.amdgcn_target "amdgcn-amd-amdhsa--gfx950"')
    out.append(".text")

def kernel_begin(name):
    out.extend([f".globl {name}", ".p2align 8", f".type {name},@function", f"{name}:"])

def kdesc(name, vgpr, accum, sgpr=102):
    out.extend(['.section .rodata,"a"', ".p2align 6", f".amdhsa_kernel {name}",
        f"  .amdhsa_next_free_vgpr {vgpr}", f"  .amdhsa_next_free_sgpr {sgpr}", f"  .amdhsa_accum_offset {accum}",
        "  .amdhsa_group_segment_fixed_size 0", "  .amdhsa_kernarg_size 64", "  .amdhsa_user_sgpr_count 2",
        "  .amdhsa_user_sgpr_kernarg_segment_ptr 1", "  .amdhsa_system_sgpr_workgroup_id_x 1", ".end_amdhsa_kernel"])

if __name__ == "__main__":
    main = NAME + "_kernel"
    if opt.mode == "stream":
        header(["; @launch grid=(256,1,1) block=(256,1,1) lds=%d" % LDS_BYTES])
        kernel_begin(main)
        prologue()
        stream_loop()
        lab("L_exit"); e("s_endpgm")
        kdesc(main, 320, 256)
    else:
        import gen_full
        gen_full.build(sys.modules[__name__])
    open(sys.argv[1], "w").write("\n".join(out) + "\n")
```

```python
import sys, re

NAME = "standalone__paged_block_table_kv_pagedattention__sampling"
KV_BYTES = 4100 * 32768
Q_BYTES = 8 * 32 * 32 * 128 * 2
SLOT_STRIDE = 40
WS_L_OFF = 8 * SLOT_STRIDE * 32768
WS_USED = WS_L_OFF + 8 * SLOT_STRIDE * 512
STAMP_OFF = 0x2000000

class Opt:
    mode = "full"; mapping = 0; nt = 1; stamps = 0; thr = 8.0; stpol = ""; hmask = 255; serial = 0; D = 2; cap = 6; dbg = 0
opt = Opt()
for a in sys.argv[2:]:
    k, v = a.split("=")
    cur = getattr(opt, k)
    setattr(opt, k, type(cur)(v))

out = []
def e(s): out.append("    " + s)
def lab(s): out.append(s + ":")
def cm(s): out.append("    ; " + s)

S_Q, S_K, S_V, S_BT, S_CL, S_OUT, S_DBG, S_WS = 4, 6, 8, 10, 12, 14, 16, 18
R_K, R_V, R_Q, R_WS, R_BT = 20, 24, 28, 32, 36
S_CLV = 40
S_T = 48
S_P = 56
S_H, S_J, S_START, S_END, S_W = 65, 66, 67, 68, 69
S_B, S_SEND, S_LEN, S_C, S_CN = 70, 71, 72, 73, 74
S_I, S_N, S_G = 75, 76, 77
S_KRD, S_VRD = 78, 79
S_KWR, S_VWR = 80, 81
S_SOK, S_SOV = 82, 83
S_FLUSH, S_QAGE, S_BPV = 84, 85, 86
S_T0, S_T1, S_T2, S_T3 = 88, 89, 90, 91
S_THR, S_IDX = 92, 93
S_TS = 94
V_LANE, V_BT, V_CL = 1, 2, 3
V_OK, V_OV = 4, 8
V_KB, V_VB = 12, 20
V_KA, V_VA = 24, 32
V_M, V_L, V_TM = 36, 37, 38
V_T = 39
V_QO, V_ST = 46, 47
V_P = 48
V_S = [64, 96]
V_O = 128
V_KF = 192
V_VF = 224
A_Q, A_QN = 0, 32
NP = opt.D + 1
RING = NP * 32768
BT_OFF = RING
LDS_BYTES = RING + 16384
S_LIM, S_MASKG = 87, 96
NT = {0:"",1:" nt",2:" sc1",3:" sc0 sc1",4:" sc1 nt",5:" sc0 sc1 nt",6:" sc0 nt"}[opt.nt]

def srd(r, p, nbytes):
    e(f"s_mov_b32 s{r}, s{p}")
    e(f"s_and_b32 s{r+1}, s{p+1}, 0xffff")
    e(f"s_mov_b32 s{r+2}, {nbytes}")
    e(f"s_mov_b32 s{r+3}, 0x00020000")

def partition(nwg_shift):
    for b in range(8):
        e(f"s_cmp_lt_i32 s{S_CLV+b}, 1")
        e(f"s_cselect_b32 s{S_T0}, 0x2000, s{S_CLV+b}")
        e(f"s_min_u32 s{S_T0}, s{S_T0}, 0x2000")
        e(f"s_add_u32 s{S_T0}, s{S_T0}, 63")
        e(f"s_lshr_b32 s{S_T+b}, s{S_T0}, 6")
    e(f"s_mov_b32 s{S_P}, 0")
    for b in range(8):
        e(f"s_add_u32 s{S_P+b+1}, s{S_P+b}, s{S_T+b}")

def seg_params(cdst):
    e(f"v_readlane_b32 s{S_T0}, v{V_CL}, s{S_B}")
    e("s_nop 3")
    e(f"s_cmp_lt_i32 s{S_T0}, 1")
    e(f"s_cselect_b32 s{cdst}, 0, 0x3e0293ee")
    e(f"s_cselect_b32 s{S_T0}, 0x2000, s{S_T0}")
    e(f"s_min_u32 s{S_LEN}, s{S_T0}, 0x2000")
    e(f"s_add_u32 s{S_T0}, s{S_LEN}, 63")
    e(f"s_lshr_b32 s{S_T0}, s{S_T0}, 6")
    e(f"s_add_u32 s{S_SEND}, s{S_SEND}, s{S_T0}")
    e(f"s_sub_u32 s{S_T0}, s{S_SEND}, 1")
    e(f"s_and_b32 s{S_T1}, s{S_LEN}, 63")
    e(f"s_cselect_b32 s{S_MASKG}, s{S_T0}, -1")
    e(f"s_min_u32 s{S_LIM}, s{S_SEND}, s{S_END}")

def q_loads(areg, sb):
    e(f"s_lshl_b32 s{S_T0}, s{sb}, 3")
    e(f"s_add_u32 s{S_T0}, s{S_T0}, s{S_H}")
    e(f"s_lshl_b32 s{S_T0}, s{S_T0}, 15")
    for s in range(8):
        e(f"buffer_load_dwordx4 a[{areg+4*s}:{areg+4*s+3}], v{V_QO}, s[{R_Q}:{R_Q+3}], s{S_T0} offen offset:{32*s}")

def dma(kind):
    r, so, vo = (R_K, S_SOK, V_OK) if kind == "K" else (R_V, S_SOV, V_OV)
    l = []
    for t in range(4):
        l.append(f"buffer_load_dwordx4 v{vo+t}, s[{r}:{r+3}], s{so} offen offset:{1024*t}{NT} lds")
        if opt.serial: l.append(f"s_waitcnt vmcnt({opt.serial-1})")
    return l

V_STAMP = 45
def stamp(k):
    if opt.stamps:
        e(f"s_memrealtime s[{S_TS}:{S_TS+1}]")
        e("s_waitcnt lgkmcnt(0)")
        e(f"v_writelane_b32 v{V_STAMP}, s{S_TS}, {k}")

def prologue():
    e("s_cmp_ge_u32 s2, 256")
    e("s_cbranch_scc1 L_exit")
    stamp(0)
    if opt.dbg:
        e("s_memrealtime s[98:99]"); e("s_memtime s[100:101]")
    e("s_load_dwordx16 s[4:19], s[0:1], 0")
    e(f"v_and_b32 v{V_LANE}, 63, v0")
    e(f"v_lshrrev_b32 v{V_T}, 6, v0")
    if opt.mapping == 0:
        e(f"s_and_b32 s{S_H}, s2, 7"); e(f"s_lshr_b32 s{S_J}, s2, 3")
    elif opt.mapping == 1:
        e(f"s_lshr_b32 s{S_H}, s2, 5"); e(f"s_and_b32 s{S_J}, s2, 31")
    else:
        e(f"s_lshr_b32 s{S_H}, s2, 3"); e(f"s_and_b32 s{S_H}, s{S_H}, 7")
        e(f"s_lshr_b32 s{S_J}, s2, 6"); e(f"s_lshl_b32 s{S_J}, s{S_J}, 3")
        e(f"s_and_b32 s{S_T0}, s2, 7"); e(f"s_or_b32 s{S_J}, s{S_J}, s{S_T0}")
    if opt.hmask != 255:
        e(f"s_lshr_b32 s{S_T0}, {opt.hmask}, s{S_H}")
        e(f"s_and_b32 s{S_T0}, s{S_T0}, 1")
        e("s_cbranch_scc0 L_exit")
    e(f"v_readfirstlane_b32 s{S_W}, v{V_T}")
    e(f"v_lshlrev_b32 v{V_T+1}, 4, v0")
    e("s_waitcnt lgkmcnt(0)")
    stamp(1)
    e(f"s_load_dwordx8 s[{S_CLV}:{S_CLV+7}], s[{S_CL}:{S_CL+1}], 0")
    srd(R_BT, S_BT, 16384)
    cm("stage the whole block table in the last ring slot")
    e(f"s_lshl_b32 s{S_T0}, s{S_W}, 12")
    e(f"s_add_u32 m0, s{S_T0}, {BT_OFF}")
    e(f"v_lshlrev_b32 v{V_T+1}, 4, v{V_LANE}")
    for t in range(4):
        e(f"buffer_load_dwordx4 v{V_T+1}, s[{R_BT}:{R_BT+3}], s{S_T0} offen offset:{1024*t} lds")
    srd(R_K, S_K, KV_BYTES); srd(R_V, S_V, KV_BYTES); srd(R_Q, S_Q, Q_BYTES); srd(R_WS, S_WS, WS_USED if not opt.stamps else STAMP_OFF + 65536)
    cm("per-lane DMA source offsets")
    T = V_T
    e(f"v_lshrrev_b32 v{T}, 4, v{V_LANE}")
    e(f"v_and_b32 v{T+1}, 15, v{V_LANE}")
    e(f"v_lshlrev_b32 v{T+2}, 2, v{T}")
    e(f"v_xor_b32 v{T+2}, v{T+2}, v{T+1}")
    e(f"v_lshlrev_b32 v{T+2}, 4, v{T+2}")
    e(f"v_lshl_add_u32 v{T+2}, v{T}, 11, v{T+2}")
    for t in range(4):
        e(f"v_add_u32 v{V_OV+t}, {t*7168}, v{T+2}")
        e(f"v_add_u32 v{T+3}, {4*t}, v{T}")
        e(f"v_xor_b32 v{T+3}, v{T+3}, v{T+1}")
        e(f"v_lshlrev_b32 v{T+3}, 4, v{T+3}")
        e(f"v_lshl_add_u32 v{T+3}, v{T}, 11, v{T+3}")
        e(f"v_add_u32 v{V_OK+t}, {t*7168}, v{T+3}")
    cm("per-lane LDS read bases")
    e(f"v_lshrrev_b32 v{T}, 5, v{V_LANE}")
    e(f"v_and_b32 v{T+2}, 31, v{V_LANE}")
    e(f"v_xor_b32 v{T+3}, v{T}, v{T+1}")
    e(f"v_lshlrev_b32 v{T+3}, 4, v{T+3}")
    e(f"v_lshl_add_u32 v{T+3}, v{T+2}, 8, v{T+3}")
    for s in range(8):
        e(f"v_xor_b32 v{V_KB+s}, {32*s}, v{T+3}")
    e(f"v_lshlrev_b32 v{V_QO}, 4, v{T}")
    e(f"v_lshl_add_u32 v{V_QO}, v{T+2}, 8, v{V_QO}")
    e(f"s_lshl_b32 s{S_T0}, s{S_W}, 13")
    e(f"v_add_u32 v{V_QO}, s{S_T0}, v{V_QO}")
    e(f"v_lshl_add_u32 v{V_ST}, v{V_LANE}, 4, s{S_T0}")
    e(f"v_bfe_u32 v{T+2}, v{V_LANE}, 2, 2")
    e(f"v_lshl_add_u32 v{T+3}, v{T}, 2, v{T+2}")
    e(f"v_lshlrev_b32 v{T+3}, 8, v{T+3}")
    e(f"v_lshl_add_u32 v{T+3}, v{T+2}, 6, v{T+3}")
    e(f"v_bfe_u32 v{T+4}, v{V_LANE}, 4, 1")
    e(f"v_lshl_add_u32 v{T+3}, v{T+4}, 5, v{T+3}")
    e(f"v_and_b32 v{T+4}, 3, v{V_LANE}")
    e(f"v_lshl_add_u32 v{T+3}, v{T+4}, 3, v{T+3}")
    for q in range(4):
        e(f"v_xor_b32 v{V_VB+q}, {64*q}, v{T+3}")
    e("s_waitcnt lgkmcnt(0)")
    stamp(2)
    partition(5)
    e(f"s_mul_i32 s{S_START}, s{S_J}, s{S_P+8}")
    e(f"s_add_u32 s{S_END}, s{S_START}, s{S_P+8}")
    e(f"s_lshr_b32 s{S_START}, s{S_START}, 5")
    e(f"s_lshr_b32 s{S_END}, s{S_END}, 5")
    e(f"s_sub_u32 s{S_N}, s{S_END}, s{S_START}")
    e(f"s_cmp_eq_u32 s{S_N}, 0")
    e("s_cbranch_scc1 L_exit")
    for b in range(8):
        e(f"v_writelane_b32 v{V_CL}, s{S_CLV+b}, {b}")
    e(f"s_mov_b32 s{S_B}, 0")
    e(f"s_mov_b32 s{S_SEND}, 0")
    for b in range(1, 8):
        e(f"s_cmp_le_u32 s{S_P+b}, s{S_START}")
        e(f"s_cselect_b32 s{S_B}, {b}, s{S_B}")
        e(f"s_cselect_b32 s{S_SEND}, s{S_P+b}, s{S_SEND}")
    q_loads(A_Q, S_B)
    seg_params(S_C)
    e(f"s_mov_b32 s{S_CN}, s{S_C}")
    e(f"s_cmp_lt_u32 s{S_SEND}, s{S_END}")
    e("s_cbranch_scc0 L_noqn")
    e(f"s_add_u32 s{S_T1}, s{S_B}, 1")
    q_loads(A_QN, S_T1)
    lab("L_noqn")
    cm("lane i: block-table index of (tile start+i, block w)")
    e(f"v_add_u32 v{T}, s{S_START}, v{V_LANE}")
    e(f"s_sub_u32 s{S_T0}, s{S_END}, 1")
    e(f"v_min_u32 v{T}, s{S_T0}, v{T}")
    e(f"v_lshl_add_u32 v{T+1}, v{T}, 2, s{S_W}")
    for b in range(7):
        e(f"s_lshl_b32 s{S_T0}, s{S_T+b}, 2")
        e(f"s_sub_u32 s{S_T0}, 512, s{S_T0}")
        e(f"v_cmp_le_u32 vcc, s{S_P+b+1}, v{T}")
        e(f"v_mov_b32 v{T+2}, s{S_T0}")
        e("s_nop 0")
        e(f"v_cndmask_b32 v{T+2}, 0, v{T+2}, vcc")
        e(f"v_add_u32 v{T+1}, v{T+1}, v{T+2}")
    e(f"v_lshlrev_b32 v{T+1}, 2, v{T+1}")
    e(f"v_add_u32 v{T+1}, {BT_OFF}, v{T+1}")
    e(f"s_cmp_lt_u32 s{S_SEND}, s{S_END}")
    e("s_cbranch_scc1 L_w16")
    e("s_waitcnt vmcnt(8)")
    e("s_branch L_wd")
    lab("L_w16")
    e("s_waitcnt vmcnt(16)")
    lab("L_wd")
    e("s_barrier")
    stamp(3)
    e(f"ds_read_b32 v{V_BT}, v{T+1}")
    e(f"s_lshl_b32 s{S_T0}, s{S_H}, 8")
    e(f"s_lshl_b32 s{S_KWR}, s{S_W}, 12")
    e("s_waitcnt lgkmcnt(0)")
    e(f"v_lshl_add_u32 v{V_BT}, v{V_BT}, 15, s{S_T0}")
    e("s_nop 0")
    cm("initial ring fill: K0 | K1 V0 | K2 V1 ...; tiles past the range read through a zero-size descriptor")
    for i in range(opt.D + 1):
        if i:
            e(f"s_mov_b32 s{S_SOV}, s{S_SOK}")
            e(f"s_mov_b32 s{R_V+2}, s{R_K+2}")
        e(f"v_readlane_b32 s{S_SOK}, v{V_BT}, {i}")
        e(f"s_cmp_gt_u32 s{S_N}, {i}")
        e(f"s_cselect_b32 s{R_K+2}, {KV_BYTES}, 0")
        e(f"s_add_u32 m0, s{S_KWR}, {i*32768}")
        e("s_nop 1")
        for d in dma("K"): e(d)
        if i:
            e(f"s_add_u32 m0, s{S_KWR}, {(i-1)*32768+16384}")
            e("s_nop 0")
            for d in dma("V"): e(d)
    stamp(4)
    e(f"s_add_u32 s{S_VWR}, s{S_KWR}, {opt.D*32768+16384}")
    e(f"s_mov_b32 s{S_I}, 0")
    e(f"s_mov_b32 s{S_IDX}, {opt.D+1}")
    e(f"s_mov_b32 s{S_QAGE}, -100")
    e(f"s_mov_b32 s{S_FLUSH}, 0")
    e(f"s_mov_b32 s{S_THR}, {hex(f2u(opt.thr))}")

import struct
def f2u(f): return struct.unpack("<I", struct.pack("<f", f))[0]

def ring_adv(reg, lo):
    return [f"s_add_u32 s{reg}, s{reg}, 0x8000",
            f"s_sub_u32 s{S_T3}, s{reg}, {RING}",
            f"s_cselect_b32 s{reg}, s{reg}, s{S_T3}"]

def dma_head():
    return [f"s_mov_b32 s{S_SOV}, s{S_SOK}", f"s_mov_b32 s{R_V+2}, s{R_K+2}",
            f"v_readlane_b32 s{S_SOK}, v{V_BT}, s{S_IDX}",
            f"s_mov_b32 m0, s{S_VWR}",
            f"s_cmp_lt_u32 s{S_IDX}, s{S_N}",
            f"s_cselect_b32 s{R_K+2}, {KV_BYTES}, 0"]

def dma_tail():
    return ring_adv(S_KWR, 0) + ring_adv(S_VWR, 0) + [f"s_add_u32 s{S_IDX}, s{S_IDX}, 1"]

def write_stamps():
    if opt.dbg:
        e("s_memrealtime s[94:95]"); e("s_memtime s[40:41]")
        e("s_waitcnt lgkmcnt(0)")
        srd(R_BT, S_DBG, 256)
        e("s_sub_u32 s42, s94, s98"); e("s_sub_u32 s43, s40, s100"); e("s_not_b32 s44, s98"); e("s_not_b32 s45, s42")
        for k, r in enumerate((94, 44, 42, 43, 45)):
            e(f"v_writelane_b32 v{V_T}, s{r}, {k}")
        e(f"v_lshlrev_b32 v{V_T+1}, 2, v{V_LANE}")
        e("s_mov_b64 exec, 0x1f")
        e(f"buffer_atomic_umax v{V_T}, v{V_T+1}, s[{R_BT}:{R_BT+3}], 0 offen")
        e("s_lshr_b32 s43, s43, 4")
        e(f"v_writelane_b32 v{V_T+2}, s42, 0")
        e(f"v_writelane_b32 v{V_T+2}, s43, 1")
        e("s_mov_b64 exec, 0x3")
        e(f"buffer_atomic_add v{V_T+2}, v{V_T+1}, s[{R_BT}:{R_BT+3}], 0 offen offset:20")
        e("s_mov_b64 exec, -1")
    if not opt.stamps: return
    stamp(6)
    e(f"s_getreg_b32 s{S_T1}, hwreg(HW_REG_XCC_ID)")
    e(f"v_writelane_b32 v{V_STAMP}, s{S_T1}, 7")
    e(f"s_lshl_b32 s{S_T0}, s2, 2")
    e(f"s_add_u32 s{S_T0}, s{S_T0}, s{S_W}")
    e(f"s_lshl_b32 s{S_T0}, s{S_T0}, 5")
    e(f"s_add_u32 s{S_T0}, s{S_T0}, {STAMP_OFF}")
    e(f"v_lshlrev_b32 v{V_T+1}, 2, v{V_LANE}")
    e("s_mov_b64 exec, 0xff")
    e(f"buffer_store_dword v{V_STAMP}, v{V_T+1}, s[{R_WS}:{R_WS+3}], s{S_T0} offen")
    e("s_mov_b64 exec, -1")

def stream_loop():
    e(f"s_waitcnt vmcnt({8*opt.D})")
    e("s_barrier")
    stamp(5)
    lab("L_loop")
    e(f"s_waitcnt vmcnt({8*(opt.D-1)})")
    e("s_barrier")
    for x in dma_head(): e(x)
    for d in dma("V"): e(d)
    e(f"s_mov_b32 m0, s{S_KWR}")
    e("s_nop 0")
    for d in dma("K"): e(d)
    for x in dma_tail(): e(x)
    e(f"s_add_u32 s{S_I}, s{S_I}, 1")
    e(f"s_cmp_lt_u32 s{S_I}, s{S_N}")
    e("s_cbranch_scc1 L_loop")
    write_stamps()
    e("s_endpgm")

def header(launches):
    src = open(f"cdna_kernels/{NAME}.s.ref").read().split("\n")
    hdr = [l for l in src if l.startswith(";") and "@launch" not in l]
    out.extend(hdr)
    out.extend(launches)
    out.append('.amdgcn_target "amdgcn-amd-amdhsa--gfx950"')
    out.append(".text")

def kernel_begin(name):
    out.extend([f".globl {name}", ".p2align 8", f".type {name},@function", f"{name}:"])

def kdesc(name, vgpr, accum, sgpr=102):
    out.extend(['.section .rodata,"a"', ".p2align 6", f".amdhsa_kernel {name}",
        f"  .amdhsa_next_free_vgpr {vgpr}", f"  .amdhsa_next_free_sgpr {sgpr}", f"  .amdhsa_accum_offset {accum}",
        "  .amdhsa_group_segment_fixed_size 0", "  .amdhsa_kernarg_size 64", "  .amdhsa_user_sgpr_count 2",
        "  .amdhsa_user_sgpr_kernarg_segment_ptr 1", "  .amdhsa_system_sgpr_workgroup_id_x 1", ".end_amdhsa_kernel"])

if __name__ == "__main__":
    main = NAME + "_kernel"
    if opt.mode == "stream":
        header(["; @launch grid=(256,1,1) block=(256,1,1) lds=%d" % LDS_BYTES])
        kernel_begin(main)
        prologue()
        stream_loop()
        lab("L_exit"); e("s_endpgm")
        kdesc(main, 320, 256)
    else:
        import gen_full
        gen_full.build(sys.modules[__name__])
    open(sys.argv[1], "w").write("\n".join(out) + "\n")
```

```python
import hz
def build(g):
    e, lab, cm, opt = g.e, g.lab, g.cm, g.opt
    globals().update({k: v for k, v in vars(g).items() if k.isupper()})
    V_L2 = 44
    TA, TB, T2 = V_T, V_T + 1, V_T + 2
    main = NAME + "_kernel"
    comb = "combine_kernel"
    g.header([f"; @launch kernel={main} grid=(256,1,1) block=(256,1,1) lds={LDS_BYTES}",
              f"; @launch kernel={comb} grid=(512,1,1) block=(256,1,1) lds=0"])
    g.kernel_begin(main)
    g.prologue()

    def kread(n):
        kb, s = n >> 3, n & 7
        r = V_KF + 4 * (n & 7)
        return f"ds_read_b128 v[{r}:{r+3}], v{V_KA+s} offset:{8192*kb}"
    def vread(n, u):
        s, db = n >> 2, n & 3
        r = V_VF + 4 * (n & 7) + 2 * u
        return f"ds_read_b64_tr_b16 v[{r}:{r+1}], v{V_VA+db} offset:{4096*s+2048*u}"
    def qk(n, S):
        kb, s = n >> 3, n & 7
        r = V_KF + 4 * (n & 7); d = S + 16 * kb
        c = "0" if s == 0 else f"v[{d}:{d+15}]"
        return f"v_mfma_f32_32x32x16_bf16 v[{d}:{d+15}], v[{r}:{r+3}], a[{A_Q+4*s}:{A_Q+4*s+3}], {c}"
    def pv(n):
        s, db = n >> 2, n & 3
        r = V_VF + 4 * (n & 7); d = V_O + 16 * db
        return f"v_mfma_f32_32x32x16_bf16 v[{d}:{d+15}], v[{r}:{r+3}], v[{V_P+4*s}:{V_P+4*s+3}], v[{d}:{d+15}]"
    def exp_stream(S):
        F = lambda x: f"v_fma_f32 v{S+x}, v{S+x}, s{S_C}, -v{V_M}"
        E = lambda x: f"v_exp_f32 v{S+x}, v{S+x}"
        A = lambda x: f"v_add_f32 v{V_L if x % 2 == 0 else V_L2}, v{V_L if x % 2 == 0 else V_L2}, v{S+x}"
        C = lambda x: f"v_cvt_pk_bf16_f32 v{V_P+x//2}, v{S+x}, v{S+x+1}"
        l = [F(0), F(1)]
        for x in range(0, 32, 2):
            l += [E(x), E(x + 1)]
            if x + 2 < 32: l += [F(x + 2), F(x + 3)]
            else: l += ["s_nop 0"]
            l += [C(x), A(x), A(x + 1)]
        return l
    def max_stream(S):
        l = [f"v_max3_f32 v{TA}, v{S}, v{S+1}, v{S+2}", f"v_max3_f32 v{TB}, v{S+16}, v{S+17}, v{S+18}"]
        for x in range(3, 15, 2):
            l += [f"v_max3_f32 v{TA}, v{TA}, v{S+x}, v{S+x+1}", f"v_max3_f32 v{TB}, v{TB}, v{S+16+x}, v{S+17+x}"]
        l += [f"v_max3_f32 v{TA}, v{TA}, v{S+15}, v{S+31}", f"v_max_f32 v{TA}, v{TA}, v{TB}",
              f"v_mov_b32 v{TB}, v{TA}", "PAD2", f"v_permlane32_swap_b32 v{TA}, v{TB}",
              f"v_max_f32 v{TA}, v{TA}, v{TB}", f"v_mul_f32 v{V_TM}, s{S_CN}, v{TA}"]
        return l
    def addr_k(): return [f"v_add_u32 v{V_KA+s}, s{S_KRD}, v{V_KB+s}" for s in range(8)]
    def addr_v(): return [f"v_add_u32 v{V_VA+q}, s{S_VRD}, v{V_VB+q}" for q in range(4)]

    def add_lgkm(lines):
        res, pend = [], []
        for l in lines:
            t = l.strip()
            if t.startswith("ds_read"):
                pend.append(hz.I(t).d)
            elif t.startswith("v_mfma"):
                ab = hz.I(t).ab
                idx = [k for k, d in enumerate(pend) if d & ab]
                if idx:
                    n = len(pend) - 1 - max(idx)
                    res.append(f"s_waitcnt lgkmcnt({min(n, 15)})")
                    pend = pend[max(idx) + 1:]
            res.append(l)
        return res

    def mask_path(tag, S, back):
        lab(f"L_mask{tag}")
        e(f"s_and_b32 s{S_T0}, s{S_LEN}, 63")
        e(f"v_lshrrev_b32 v{T2}, 5, v{V_LANE}")
        e(f"v_lshlrev_b32 v{T2}, 2, v{T2}")
        e(f"v_sub_u32 v{T2}, s{S_T0}, v{T2}")
        e(f"v_mov_b32 v{TB}, 0xff800000")
        e("s_nop 7")
        for r in range(32):
            k0 = 32 * (r >> 4) + 8 * ((r >> 2) & 3) + (r & 3)
            sp = "vcc" if r % 2 == 0 else f"s[{S_T2}:{S_T2+1}]"
            e(f"v_cmp_gt_i32 {sp}, v{T2}, {k0}" if sp != "vcc" else f"v_cmp_lt_i32 vcc, {k0}, v{T2}")
            if r % 2 == 1:
                e("s_nop 0")
                e(f"v_cndmask_b32 v{S+r-1}, v{TB}, v{S+r-1}, vcc")
                e(f"v_cndmask_b32 v{S+r}, v{TB}, v{S+r}, s[{S_T2}:{S_T2+1}]")
        e(f"s_branch {back}")

    n0 = len(g.out)
    e(f"s_mov_b32 s{S_KRD}, 0")
    e(f"s_mov_b32 s{S_VRD}, 16384")
    for x in addr_k(): e(x)
    for x in addr_v(): e(x)
    for r in range(64): e(f"v_mov_b32 v{V_O+r}, 0")
    e(f"v_mov_b32 v{V_L}, 0"); e(f"v_mov_b32 v{V_L2}, 0")
    e(f"s_waitcnt vmcnt({8*opt.D})")
    e("s_barrier")
    g.stamp(5)
    pre = [kread(n) for n in range(8)]
    for n in range(16):
        pre.append(qk(n, V_S[0]))
        if n < 8: pre.append(kread(n + 8))
    for x in add_lgkm(pre): e(x)
    e(f"s_mov_b32 s{S_KRD}, 0x8000")
    for x in addr_k(): e(x)
    e(f"s_add_u32 s{S_G}, s{S_START}, 1")
    e(f"s_cmp_eq_u32 s{S_START}, s{S_MASKG}")
    e("s_cbranch_scc1 L_maskp")
    lab("L_maskpb")
    e("s_nop 1")
    for x in max_stream(V_S[0]): e("s_nop 1" if x == "PAD2" else x)
    e(f"v_mov_b32 v{V_M}, v{V_TM}")

    bodies = []
    def body(par):
        S, SN = V_S[par], V_S[par ^ 1]
        lab(f"L_top{par}")
        b0 = len(g.out)
        e(f"s_cmp_eq_u32 s{S_G}, s{S_LIM}")
        e(f"s_cbranch_scc1 L_seg{par}")
        lab(f"L_segb{par}")
        e(f"s_waitcnt vmcnt({8*(opt.D-1)})")
        e("s_barrier")
        ex = exp_stream(S); mx = max_stream(SN)
        dm = g.dma("V") + g.dma("K")
        def dmai(k):
            l = [f"s_waitcnt vmcnt({opt.cap-1})"] if opt.cap else []
            if k == 4: l = [f"s_mov_b32 m0, s{S_KWR}"] + (l or ["s_nop 0"])
            return l + [dm[k]]
        seq = []
        hd = g.dma_head()
        seq += [kread(0), kread(1)] + hd[:4] + [kread(2), kread(3)] + hd[4:] + dmai(0)
        for n in range(4, 8):
            seq += [kread(n)] + ex[:2]; ex = ex[2:]
        def take(k):
            nonlocal ex
            t, ex = ex[:k], ex[k:]
            return t
        dgap = {3: 1, 7: 2, 11: 3, 15: 4, 19: 5, 23: 6, 27: 7}
        tail = g.ring_adv(S_KRD, 0) + addr_k()
        for n in range(32):
            seq.append(qk(n, SN) if n < 16 else pv(n - 16))
            if n < 8: seq += take(2) + [kread(n + 8)] + take(3)
            elif n < 24: seq += take(1) + [vread(n - 8, 0)] + take(2) + [vread(n - 8, 1)] + take(1)
            if n == 23:
                seq += take(99)
                seq += [f"s_cmp_eq_u32 s{S_G}, s{S_MASKG}", f"s_cbranch_scc1 L_mask{par}", f"L_maskb{par}:"]
            if n in dgap: seq += dmai(dgap[n])
            if 24 <= n < 28:
                seq += mx[:4]; mx = mx[4:]
                k = 3
                seq += tail[:k]; tail = tail[k:]
            if n == 28:
                seq += mx[:1] + g.ring_adv(S_VRD, 0); mx = mx[2:]
                seq += mx[:3]; mx = []
            if n == 29:
                seq += [f"v_sub_f32 v{TA}, v{V_TM}, v{V_M}"] + addr_v() + [f"v_cmp_lt_f32 vcc, s{S_THR}, v{TA}"]
            if n == 30:
                seq += g.dma_tail()
        assert not ex and not mx and not tail
        for x in add_lgkm(seq):
            if x.endswith(":"): lab(x[:-1])
            else: e(x)
        e(f"s_add_u32 s{S_I}, s{S_I}, 1")
        e(f"s_add_u32 s{S_G}, s{S_G}, 1")
        e(f"s_mov_b32 s{S_T2}, {par ^ 1}")
        e(f"s_cmp_lg_u32 s{S_FLUSH}, 0")
        e("s_cbranch_scc1 L_flush")
        e("s_cbranch_vccnz L_resc")
        if par == 1: e("s_branch L_top0")
        bodies.append(g.out[b0:])
    body(0); body(1)
    hz.check(g.out[n0:], "pre+b0+b1"); hz.check(bodies[1] + bodies[0], "b1+b0")

    def back():
        e(f"s_cmp_eq_u32 s{S_T2}, 0")
        e("s_cbranch_scc1 L_top0")
        e("s_branch L_top1")
    r0 = len(g.out)
    lab("L_resc")
    e(f"v_max_f32 v{TA}, v{V_M}, v{V_TM}")
    e(f"v_sub_f32 v{TB}, v{V_M}, v{TA}")
    e(f"v_exp_f32 v{TB}, v{TB}")
    e(f"v_mov_b32 v{V_M}, v{TA}")
    e("s_nop 11")
    e(f"v_mul_f32 v{V_L}, v{V_L}, v{TB}")
    e(f"v_mul_f32 v{V_L2}, v{V_L2}, v{TB}")
    for r in range(64): e(f"v_mul_f32 v{V_O+r}, v{V_O+r}, v{TB}")
    back()
    lab("L_flush")
    e(f"v_add_f32 v{TA}, v{V_L}, v{V_L2}")
    e(f"s_mul_i32 s{S_T0}, s{S_H}, {SLOT_STRIDE}")
    e(f"v_mov_b32 v{TB}, v{TA}")
    e(f"s_add_u32 s{S_T0}, s{S_T0}, s{S_J}")
    e(f"s_add_u32 s{S_T0}, s{S_T0}, s{S_BPV}")
    e(f"v_permlane32_swap_b32 v{TA}, v{TB}")
    e(f"v_add_f32 v{TA}, v{TA}, v{TB}")
    e(f"v_rcp_f32 v{TB}, v{TA}")
    e(f"v_log_f32 v{T2}, v{TA}")
    e(f"s_lshl_b32 s{S_T1}, s{S_T0}, 9")
    e(f"s_add_u32 s{S_T1}, s{S_T1}, {WS_L_OFF}")
    e(f"v_add_f32 v{T2}, v{T2}, v{V_M}")
    e(f"v_and_b32 v{TA}, 31, v{V_LANE}")
    e(f"s_lshl_b32 s{S_T3}, s{S_W}, 7")
    e(f"v_lshl_add_u32 v{TA}, v{TA}, 2, s{S_T3}")
    e(f"s_lshl_b32 s{S_T0}, s{S_T0}, 15")
    e(f"buffer_store_dword v{T2}, v{TA}, s[{R_WS}:{R_WS+3}], s{S_T1} offen{opt.stpol.replace('_',' ')}")
    e(f"s_add_u32 s{S_T1}, s{S_T0}, 4096")
    for gi in range(8):
        o = V_O + 8 * gi; x = V_KF + 4 * gi
        for r in range(8): e(f"v_mul_f32 v{o+r}, v{o+r}, v{TB}")
        for r in range(4): e(f"v_cvt_pk_bf16_f32 v{x+r}, v{o+2*r}, v{o+2*r+1}")
        e("s_nop 0")
        e(f"v_permlane32_swap_b32 v{x}, v{x+2}")
        e(f"v_permlane32_swap_b32 v{x+1}, v{x+3}")
        e(f"buffer_store_dwordx4 v[{x}:{x+3}], v{V_ST}, s[{R_WS}:{R_WS+3}], s{S_T0 if gi < 4 else S_T1} offen offset:{1024*(gi&3)}{opt.stpol.replace('_',' ')}")
    e(f"s_cmp_ge_u32 s{S_I}, s{S_N}")
    e("s_cbranch_scc1 L_done")
    for r in range(64): e(f"v_mov_b32 v{V_O+r}, 0")
    e(f"v_mov_b32 v{V_L}, 0"); e(f"v_mov_b32 v{V_L2}, 0")
    e(f"v_mov_b32 v{V_M}, v{V_TM}")
    e(f"s_mov_b32 s{S_C}, s{S_CN}")
    e(f"s_mov_b32 s{S_FLUSH}, 0")
    back()
    lab("L_done")
    g.write_stamps()
    lab("L_exit")
    e("s_endpgm")
    for par in range(2):
        lab(f"L_seg{par}")
        e(f"s_mov_b32 s{S_T2}, {par}")
        if par == 0: e("s_branch L_seg")
    lab("L_seg")
    e(f"s_mov_b32 s{S_BPV}, s{S_B}")
    e(f"s_mov_b32 s{S_FLUSH}, 1")
    e(f"s_cmp_eq_u32 s{S_G}, s{S_END}")
    e("s_cbranch_scc1 L_segr")
    e(f"s_sub_i32 s{S_T0}, s{S_I}, s{S_QAGE}")
    e(f"s_cmp_gt_i32 s{S_T0}, {opt.D+1}")
    e("s_cbranch_scc1 L_segq")
    e("s_waitcnt vmcnt(0)")
    lab("L_segq")
    for r in range(32): e(f"v_accvgpr_mov_b32 a{A_Q+r}, a{A_QN+r}")
    e(f"s_add_u32 s{S_B}, s{S_B}, 1")
    g.seg_params(S_CN)
    e(f"s_cmp_lt_u32 s{S_SEND}, s{S_END}")
    e("s_cbranch_scc0 L_segr")
    e(f"s_add_u32 s{S_T1}, s{S_B}, 1")
    g.q_loads(A_QN, S_T1)
    e(f"s_mov_b32 s{S_QAGE}, s{S_I}")
    lab("L_segr")
    e(f"s_cmp_eq_u32 s{S_T2}, 0")
    e("s_cbranch_scc1 L_segb0")
    e("s_branch L_segb1")
    mask_path("p", V_S[0], "L_maskpb")
    mask_path("0", V_S[1], "L_maskb0")
    mask_path("1", V_S[0], "L_maskb1")
    hz.check(g.out[r0:], "rare")

    c0 = len(g.out)
    g.kernel_begin(comb)
    G = 8
    e("s_cmp_ge_u32 s2, 512")
    e("s_cbranch_scc1 C_exit")
    e("s_load_dwordx8 s[12:19], s[0:1], 32")
    e(f"s_lshr_b32 s{S_B}, s2, 6")
    e(f"s_bfe_u32 s{S_H}, s2, 0x30003")
    e(f"s_and_b32 s{S_W}, s2, 7")
    e("v_and_b32 v1, 63, v0")
    e("v_and_b32 v2, 31, v0")
    e(f"s_lshl_b32 s{S_T0}, s{S_W}, 12")
    e(f"v_lshl_add_u32 v3, v0, 4, s{S_T0}")
    e(f"s_lshr_b32 s{S_T1}, s{S_W}, 1")
    e(f"s_lshl_b32 s{S_T0}, s{S_T1}, 7")
    e(f"v_lshl_add_u32 v4, v2, 2, s{S_T0}")
    e("s_waitcnt lgkmcnt(0)")
    e(f"s_load_dwordx8 s[{S_CLV}:{S_CLV+7}], s[{S_CL}:{S_CL+1}], 0")
    g.srd(R_WS, S_WS, WS_USED); g.srd(R_Q, S_OUT, Q_BYTES)
    cm("output offset")
    e(f"s_lshl_b32 s{S_T0}, s{S_B}, 3")
    e(f"s_add_u32 s{S_T0}, s{S_T0}, s{S_H}")
    e(f"s_lshl_b32 s{S_T0}, s{S_T0}, 2")
    e(f"s_add_u32 s{S_T0}, s{S_T0}, s{S_T1}")
    e(f"s_lshl_b32 s{S_T0}, s{S_T0}, 13")
    e(f"s_and_b32 s{S_T1}, s{S_W}, 1")
    e(f"s_lshl_b32 s{S_T1}, s{S_T1}, 7")
    e(f"s_add_u32 s{S_T0}, s{S_T0}, s{S_T1}")
    e(f"v_lshl_add_u32 v5, v2, 8, s{S_T0}")
    e("v_lshrrev_b32 v6, 5, v0")
    e("v_lshl_add_u32 v5, v6, 4, v5")
    e("v_mov_b32 v8, 0xff800000")
    e("v_mov_b32 v9, 0")
    for r in range(8): e(f"v_mov_b32 v{10+r}, 0")
    e("s_waitcnt lgkmcnt(0)")
    g.partition(5)
    e(f"s_mov_b32 s{S_START}, 0"); e(f"s_mov_b32 s{S_END}, s{S_P+1}")
    for b in range(1, 8):
        e(f"s_cmp_eq_u32 s{S_B}, {b}")
        e(f"s_cselect_b32 s{S_START}, s{S_P+b}, s{S_START}")
        e(f"s_cselect_b32 s{S_END}, s{S_P+b+1}, s{S_END}")
    e(f"v_mul_u32_u24 v6, s{S_P+8}, v1")
    e(f"v_add_u32 v7, s{S_P+8}, v6")
    e("v_lshrrev_b32 v6, 5, v6")
    e("v_lshrrev_b32 v7, 5, v7")
    e(f"v_max_u32 v6, s{S_START}, v6")
    e(f"v_min_u32 v7, s{S_END}, v7")
    e("v_cmp_lt_u32 vcc, v6, v7")
    e(f"s_mul_i32 s{S_J}, s{S_H}, {SLOT_STRIDE}")
    e(f"s_add_u32 s{S_J}, s{S_J}, s{S_B}")
    e("s_nop 2")
    e(f"s_mov_b32 s{S_G}, vcc_lo")
    lab("C_group")
    e(f"s_mov_b32 s{S_N}, 0")
    for k in range(G):
        e(f"s_ff1_i32_b32 s{S_T0}, s{S_G}")
        e(f"s_bitset0_b32 s{S_G}, s{S_T0}")
        e(f"s_add_u32 s{S_T0}, s{S_T0}, s{S_J}")
        e(f"s_lshl_b32 s{S_T1}, s{S_T0}, 9")
        e(f"s_add_u32 s{S_T1}, s{S_T1}, {WS_L_OFF}")
        e(f"s_lshl_b32 s{S_T0}, s{S_T0}, 15")
        e(f"buffer_load_dword v{20+k}, v4, s[{R_WS}:{R_WS+3}], s{S_T1} offen")
        e(f"buffer_load_dwordx4 v[{28+4*k}:{31+4*k}], v3, s[{R_WS}:{R_WS+3}], s{S_T0} offen")
        e(f"s_add_u32 s{S_N}, s{S_N}, 1")
        if k < G - 1:
            e(f"s_cmp_eq_u32 s{S_G}, 0")
            e("s_cbranch_scc1 C_issued")
    lab("C_issued")
    e("s_waitcnt vmcnt(0)")
    for k in range(G):
        e(f"v_max_f32 v6, v8, v{20+k}")
        e("v_sub_f32 v7, v8, v6")
        e(f"v_sub_f32 v18, v{20+k}, v6")
        e("v_exp_f32 v7, v7")
        e("v_exp_f32 v18, v18")
        e("v_mov_b32 v8, v6")
        e("v_fma_f32 v9, v9, v7, v18")
        for r in range(4):
            e(f"v_lshlrev_b32 v6, 16, v{28+4*k+r}")
            e(f"v_and_b32 v19, 0xffff0000, v{28+4*k+r}")
            e("v_mul_f32 v6, v6, v18")
            e("v_mul_f32 v19, v19, v18")
            e(f"v_fma_f32 v{10+2*r}, v{10+2*r}, v7, v6")
            e(f"v_fma_f32 v{11+2*r}, v{11+2*r}, v7, v19")
        if k < G - 1:
            e(f"s_cmp_eq_u32 s{S_N}, {k+1}")
            e("s_cbranch_scc1 C_acc")
    lab("C_acc")
    e(f"s_cmp_lg_u32 s{S_G}, 0")
    e("s_cbranch_scc1 C_group")
    e("v_rcp_f32 v9, v9")
    e("s_nop 0")
    for r in range(8): e(f"v_mul_f32 v{10+r}, v{10+r}, v9")
    for r in range(4): e(f"v_cvt_pk_bf16_f32 v{20+r}, v{10+2*r}, v{11+2*r}")
    e(f"buffer_store_dwordx4 v[20:23], v5, s[{R_Q}:{R_Q+3}], 0 offen")
    if opt.dbg:
        e("s_cmp_lg_u32 s2, 0")
        e("s_cbranch_scc1 C_exit")
        e("s_memrealtime s[98:99]")
        g.srd(R_WS, S_WS, STAMP_OFF + 65536); g.srd(R_BT, S_DBG, 256)
        e("v_lshlrev_b32 v1, 7, v0")
        e(f"s_mov_b32 s{S_T0}, {STAMP_OFF}")
        e(f"buffer_load_dwordx4 v[4:7], v1, s[{R_WS}:{R_WS+3}], s{S_T0} offen")
        e(f"buffer_load_dwordx4 v[8:11], v1, s[{R_WS}:{R_WS+3}], s{S_T0} offen offset:16")
        e("s_waitcnt vmcnt(0) lgkmcnt(0)")
        e("v_mov_b32 v2, 0")
        e("v_not_b32 v12, v4"); e("v_sub_u32 v13, v10, v4"); e("v_lshrrev_b32 v14, 4, v11"); e("v_not_b32 v15, v10")
        e("v_mov_b32 v16, s98"); e("v_sub_u32 v17, v7, v4"); e("v_sub_u32 v18, v9, v4")
        for k, (op, r) in enumerate((("umax", 10), ("umax", 12), ("add", 13), ("add", 14), ("umax", 15), ("umax", 16), ("add", 17), ("add", 18), ("umax", 4))):
            e(f"buffer_atomic_{op} v{r}, v2, s[{R_BT}:{R_BT+3}], 0 offen offset:{4*k}")
    lab("C_exit")
    e("s_endpgm")
    hz.check([l for l in g.out[c0:] if l.startswith("    ")], "combine")
    g.kdesc(main, 320, 256)
    g.kdesc(comb, 64, 64)
```

```python
import sys, re

NAME = "standalone__paged_block_table_kv_pagedattention__sampling"
KV_BYTES = 4100 * 32768
Q_BYTES = 8 * 32 * 32 * 128 * 2
SLOT_STRIDE = 40
WS_L_OFF = 8 * SLOT_STRIDE * 32768
WS_USED = WS_L_OFF + 8 * SLOT_STRIDE * 512
STAMP_OFF = 0x2000000

class Opt:
    mode = "full"; mapping = 0; nt = 1; stamps = 0; thr = 8.0; stpol = ""; hmask = 255; serial = 0; D = 2; cap = 6; dbg = 0
opt = Opt()
for a in sys.argv[2:]:
    k, v = a.split("=")
    cur = getattr(opt, k)
    setattr(opt, k, type(cur)(v))

out = []
def e(s): out.append("    " + s)
def lab(s): out.append(s + ":")
def cm(s): out.append("    ; " + s)

S_Q, S_K, S_V, S_BT, S_CL, S_OUT, S_DBG, S_WS = 4, 6, 8, 10, 12, 14, 16, 18
R_K, R_V, R_Q, R_WS, R_BT = 20, 24, 28, 32, 36
S_CLV = 40
S_T = 48
S_P = 56
S_H, S_J, S_START, S_END, S_W = 65, 66, 67, 68, 69
S_B, S_SEND, S_LEN, S_C, S_CN = 70, 71, 72, 73, 74
S_I, S_N, S_G = 75, 76, 77
S_KRD, S_VRD = 78, 79
S_KWR, S_VWR = 80, 81
S_SOK, S_SOV = 82, 83
S_FLUSH, S_QAGE, S_BPV = 84, 85, 86
S_T0, S_T1, S_T2, S_T3 = 88, 89, 90, 91
S_THR, S_IDX = 92, 93
S_TS = 94
V_LANE, V_BT, V_CL = 1, 2, 3
V_OK, V_OV = 4, 8
V_KB, V_VB = 12, 20
V_KA, V_VA = 24, 32
V_M, V_L, V_TM = 36, 37, 38
V_T = 39
V_QO, V_ST = 46, 47
V_P = 48
V_S = [64, 96]
V_O = 128
V_KF = 192
V_VF = 224
A_Q, A_QN = 0, 32
NP = opt.D + 1
RING = NP * 32768
BT_OFF = RING
LDS_BYTES = RING + 16384
S_LIM, S_MASKG = 87, 96
NT = {0:"",1:" nt",2:" sc1",3:" sc0 sc1",4:" sc1 nt",5:" sc0 sc1 nt",6:" sc0 nt"}[opt.nt]

def srd(r, p, nbytes):
    e(f"s_mov_b32 s{r}, s{p}")
    e(f"s_and_b32 s{r+1}, s{p+1}, 0xffff")
    e(f"s_mov_b32 s{r+2}, {nbytes}")
    e(f"s_mov_b32 s{r+3}, 0x00020000")

def partition(nwg_shift):
    for b in range(8):
        e(f"s_cmp_lt_i32 s{S_CLV+b}, 1")
        e(f"s_cselect_b32 s{S_T0}, 0x2000, s{S_CLV+b}")
        e(f"s_min_u32 s{S_T0}, s{S_T0}, 0x2000")
        e(f"s_add_u32 s{S_T0}, s{S_T0}, 63")
        e(f"s_lshr_b32 s{S_T+b}, s{S_T0}, 6")
    e(f"s_mov_b32 s{S_P}, 0")
    for b in range(8):
        e(f"s_add_u32 s{S_P+b+1}, s{S_P+b}, s{S_T+b}")

def seg_params(cdst):
    e(f"v_readlane_b32 s{S_T0}, v{V_CL}, s{S_B}")
    e("s_nop 3")
    e(f"s_cmp_lt_i32 s{S_T0}, 1")
    e(f"s_cselect_b32 s{cdst}, 0, 0x3e0293ee")
    e(f"s_cselect_b32 s{S_T0}, 0x2000, s{S_T0}")
    e(f"s_min_u32 s{S_LEN}, s{S_T0}, 0x2000")
    e(f"s_add_u32 s{S_T0}, s{S_LEN}, 63")
    e(f"s_lshr_b32 s{S_T0}, s{S_T0}, 6")
    e(f"s_add_u32 s{S_SEND}, s{S_SEND}, s{S_T0}")
    e(f"s_sub_u32 s{S_T0}, s{S_SEND}, 1")
    e(f"s_and_b32 s{S_T1}, s{S_LEN}, 63")
    e(f"s_cselect_b32 s{S_MASKG}, s{S_T0}, -1")
    e(f"s_min_u32 s{S_LIM}, s{S_SEND}, s{S_END}")

def q_loads(areg, sb):
    e(f"s_lshl_b32 s{S_T0}, s{sb}, 3")
    e(f"s_add_u32 s{S_T0}, s{S_T0}, s{S_H}")
    e(f"s_lshl_b32 s{S_T0}, s{S_T0}, 15")
    for s in range(8):
        e(f"buffer_load_dwordx4 a[{areg+4*s}:{areg+4*s+3}], v{V_QO}, s[{R_Q}:{R_Q+3}], s{S_T0} offen offset:{32*s}")

def dma(kind):
    r, so, vo = (R_K, S_SOK, V_OK) if kind == "K" else (R_V, S_SOV, V_OV)
    l = []
    for t in range(4):
        l.append(f"buffer_load_dwordx4 v{vo+t}, s[{r}:{r+3}], s{so} offen offset:{1024*t}{NT} lds")
        if opt.serial: l.append(f"s_waitcnt vmcnt({opt.serial-1})")
    return l

V_STAMP = 45
def stamp(k):
    if opt.stamps:
        e(f"s_memrealtime s[{S_TS}:{S_TS+1}]")
        e("s_waitcnt lgkmcnt(0)")
        e(f"v_writelane_b32 v{V_STAMP}, s{S_TS}, {k}")

def prologue():
    e("s_cmp_ge_u32 s2, 256")
    e("s_cbranch_scc1 L_exit")
    stamp(0)
    if opt.dbg:
        e("s_memtime s[100:101]")
    e("s_load_dwordx16 s[4:19], s[0:1], 0")
    e(f"v_and_b32 v{V_LANE}, 63, v0")
    e(f"v_lshrrev_b32 v{V_T}, 6, v0")
    if opt.mapping == 0:
        e(f"s_and_b32 s{S_H}, s2, 7"); e(f"s_lshr_b32 s{S_J}, s2, 3")
    elif opt.mapping == 1:
        e(f"s_lshr_b32 s{S_H}, s2, 5"); e(f"s_and_b32 s{S_J}, s2, 31")
    else:
        e(f"s_lshr_b32 s{S_H}, s2, 3"); e(f"s_and_b32 s{S_H}, s{S_H}, 7")
        e(f"s_lshr_b32 s{S_J}, s2, 6"); e(f"s_lshl_b32 s{S_J}, s{S_J}, 3")
        e(f"s_and_b32 s{S_T0}, s2, 7"); e(f"s_or_b32 s{S_J}, s{S_J}, s{S_T0}")
    if opt.hmask != 255:
        e(f"s_lshr_b32 s{S_T0}, {opt.hmask}, s{S_H}")
        e(f"s_and_b32 s{S_T0}, s{S_T0}, 1")
        e("s_cbranch_scc0 L_exit")
    e(f"v_readfirstlane_b32 s{S_W}, v{V_T}")
    e(f"v_lshlrev_b32 v{V_T+1}, 4, v0")
    e("s_waitcnt lgkmcnt(0)")
    stamp(1)
    e(f"s_load_dwordx8 s[{S_CLV}:{S_CLV+7}], s[{S_CL}:{S_CL+1}], 0")
    srd(R_BT, S_BT, 16384)
    cm("stage the whole block table in the last ring slot")
    e(f"s_lshl_b32 s{S_T0}, s{S_W}, 12")
    e(f"s_add_u32 m0, s{S_T0}, {BT_OFF}")
    e(f"v_lshlrev_b32 v{V_T+1}, 4, v{V_LANE}")
    for t in range(4):
        e(f"buffer_load_dwordx4 v{V_T+1}, s[{R_BT}:{R_BT+3}], s{S_T0} offen offset:{1024*t} lds")
    srd(R_K, S_K, KV_BYTES); srd(R_V, S_V, KV_BYTES); srd(R_Q, S_Q, Q_BYTES); srd(R_WS, S_WS, WS_USED if not opt.stamps else STAMP_OFF + 65536)
    cm("per-lane DMA source offsets")
    T = V_T
    e(f"v_lshrrev_b32 v{T}, 4, v{V_LANE}")
    e(f"v_and_b32 v{T+1}, 15, v{V_LANE}")
    e(f"v_lshlrev_b32 v{T+2}, 2, v{T}")
    e(f"v_xor_b32 v{T+2}, v{T+2}, v{T+1}")
    e(f"v_lshlrev_b32 v{T+2}, 4, v{T+2}")
    e(f"v_lshl_add_u32 v{T+2}, v{T}, 11, v{T+2}")
    for t in range(4):
        e(f"v_add_u32 v{V_OV+t}, {t*7168}, v{T+2}")
        e(f"v_add_u32 v{T+3}, {4*t}, v{T}")
        e(f"v_xor_b32 v{T+3}, v{T+3}, v{T+1}")
        e(f"v_lshlrev_b32 v{T+3}, 4, v{T+3}")
        e(f"v_lshl_add_u32 v{T+3}, v{T}, 11, v{T+3}")
        e(f"v_add_u32 v{V_OK+t}, {t*7168}, v{T+3}")
    cm("per-lane LDS read bases")
    e(f"v_lshrrev_b32 v{T}, 5, v{V_LANE}")
    e(f"v_and_b32 v{T+2}, 31, v{V_LANE}")
    e(f"v_xor_b32 v{T+3}, v{T}, v{T+1}")
    e(f"v_lshlrev_b32 v{T+3}, 4, v{T+3}")
    e(f"v_lshl_add_u32 v{T+3}, v{T+2}, 8, v{T+3}")
    for s in range(8):
        e(f"v_xor_b32 v{V_KB+s}, {32*s}, v{T+3}")
    e(f"v_lshlrev_b32 v{V_QO}, 4, v{T}")
    e(f"v_lshl_add_u32 v{V_QO}, v{T+2}, 8, v{V_QO}")
    e(f"s_lshl_b32 s{S_T0}, s{S_W}, 13")
    e(f"v_add_u32 v{V_QO}, s{S_T0}, v{V_QO}")
    e(f"v_lshl_add_u32 v{V_ST}, v{V_LANE}, 4, s{S_T0}")
    e(f"v_bfe_u32 v{T+2}, v{V_LANE}, 2, 2")
    e(f"v_lshl_add_u32 v{T+3}, v{T}, 2, v{T+2}")
    e(f"v_lshlrev_b32 v{T+3}, 8, v{T+3}")
    e(f"v_lshl_add_u32 v{T+3}, v{T+2}, 6, v{T+3}")
    e(f"v_bfe_u32 v{T+4}, v{V_LANE}, 4, 1")
    e(f"v_lshl_add_u32 v{T+3}, v{T+4}, 5, v{T+3}")
    e(f"v_and_b32 v{T+4}, 3, v{V_LANE}")
    e(f"v_lshl_add_u32 v{T+3}, v{T+4}, 3, v{T+3}")
    for q in range(4):
        e(f"v_xor_b32 v{V_VB+q}, {64*q}, v{T+3}")
    e("s_waitcnt lgkmcnt(0)")
    stamp(2)
    partition(5)
    e(f"s_mul_i32 s{S_START}, s{S_J}, s{S_P+8}")
    e(f"s_add_u32 s{S_END}, s{S_START}, s{S_P+8}")
    e(f"s_lshr_b32 s{S_START}, s{S_START}, 5")
    e(f"s_lshr_b32 s{S_END}, s{S_END}, 5")
    e(f"s_sub_u32 s{S_N}, s{S_END}, s{S_START}")
    e(f"s_cmp_eq_u32 s{S_N}, 0")
    e("s_cbranch_scc1 L_exit")
    for b in range(8):
        e(f"v_writelane_b32 v{V_CL}, s{S_CLV+b}, {b}")
    e(f"s_mov_b32 s{S_B}, 0")
    e(f"s_mov_b32 s{S_SEND}, 0")
    for b in range(1, 8):
        e(f"s_cmp_le_u32 s{S_P+b}, s{S_START}")
        e(f"s_cselect_b32 s{S_B}, {b}, s{S_B}")
        e(f"s_cselect_b32 s{S_SEND}, s{S_P+b}, s{S_SEND}")
    q_loads(A_Q, S_B)
    seg_params(S_C)
    e(f"s_mov_b32 s{S_CN}, s{S_C}")
    e(f"s_cmp_lt_u32 s{S_SEND}, s{S_END}")
    e("s_cbranch_scc0 L_noqn")
    e(f"s_add_u32 s{S_T1}, s{S_B}, 1")
    q_loads(A_QN, S_T1)
    lab("L_noqn")
    cm("lane i: block-table index of (tile start+i, block w)")
    e(f"v_add_u32 v{T}, s{S_START}, v{V_LANE}")
    e(f"s_sub_u32 s{S_T0}, s{S_END}, 1")
    e(f"v_min_u32 v{T}, s{S_T0}, v{T}")
    e(f"v_lshl_add_u32 v{T+1}, v{T}, 2, s{S_W}")
    for b in range(7):
        e(f"s_lshl_b32 s{S_T0}, s{S_T+b}, 2")
        e(f"s_sub_u32 s{S_T0}, 512, s{S_T0}")
        e(f"v_cmp_le_u32 vcc, s{S_P+b+1}, v{T}")
        e(f"v_mov_b32 v{T+2}, s{S_T0}")
        e("s_nop 0")
        e(f"v_cndmask_b32 v{T+2}, 0, v{T+2}, vcc")
        e(f"v_add_u32 v{T+1}, v{T+1}, v{T+2}")
    e(f"v_lshlrev_b32 v{T+1}, 2, v{T+1}")
    e(f"v_add_u32 v{T+1}, {BT_OFF}, v{T+1}")
    e(f"s_cmp_lt_u32 s{S_SEND}, s{S_END}")
    e("s_cbranch_scc1 L_w16")
    e("s_waitcnt vmcnt(8)")
    e("s_branch L_wd")
    lab("L_w16")
    e("s_waitcnt vmcnt(16)")
    lab("L_wd")
    e("s_barrier")
    stamp(3)
    e(f"ds_read_b32 v{V_BT}, v{T+1}")
    e(f"s_lshl_b32 s{S_T0}, s{S_H}, 8")
    e(f"s_lshl_b32 s{S_KWR}, s{S_W}, 12")
    e("s_waitcnt lgkmcnt(0)")
    e(f"v_lshl_add_u32 v{V_BT}, v{V_BT}, 15, s{S_T0}")
    e("s_nop 0")
    cm("initial ring fill: K0 | K1 V0 | K2 V1 ...; tiles past the range read through a zero-size descriptor")
    for i in range(opt.D + 1):
        if i:
            e(f"s_mov_b32 s{S_SOV}, s{S_SOK}")
            e(f"s_mov_b32 s{R_V+2}, s{R_K+2}")
        e(f"v_readlane_b32 s{S_SOK}, v{V_BT}, {i}")
        e(f"s_cmp_gt_u32 s{S_N}, {i}")
        e(f"s_cselect_b32 s{R_K+2}, {KV_BYTES}, 0")
        e(f"s_add_u32 m0, s{S_KWR}, {i*32768}")
        e("s_nop 1")
        for d in dma("K"): e(d)
        if i:
            e(f"s_add_u32 m0, s{S_KWR}, {(i-1)*32768+16384}")
            e("s_nop 0")
            for d in dma("V"): e(d)
    stamp(4)
    e(f"s_add_u32 s{S_VWR}, s{S_KWR}, {opt.D*32768+16384}")
    e(f"s_mov_b32 s{S_I}, 0")
    e(f"s_mov_b32 s{S_IDX}, {opt.D+1}")
    e(f"s_mov_b32 s{S_QAGE}, -100")
    e(f"s_mov_b32 s{S_FLUSH}, 0")
    e(f"s_mov_b32 s{S_THR}, {hex(f2u(opt.thr))}")

import struct
def f2u(f): return struct.unpack("<I", struct.pack("<f", f))[0]

def ring_adv(reg, lo):
    return [f"s_add_u32 s{reg}, s{reg}, 0x8000",
            f"s_sub_u32 s{S_T3}, s{reg}, {RING}",
            f"s_cselect_b32 s{reg}, s{reg}, s{S_T3}"]

def dma_head():
    return [f"s_mov_b32 s{S_SOV}, s{S_SOK}", f"s_mov_b32 s{R_V+2}, s{R_K+2}",
            f"v_readlane_b32 s{S_SOK}, v{V_BT}, s{S_IDX}",
            f"s_mov_b32 m0, s{S_VWR}",
            f"s_cmp_lt_u32 s{S_IDX}, s{S_N}",
            f"s_cselect_b32 s{R_K+2}, {KV_BYTES}, 0"]

def dma_tail():
    return ring_adv(S_KWR, 0) + ring_adv(S_VWR, 0) + [f"s_add_u32 s{S_IDX}, s{S_IDX}, 1"]

def write_stamps():
    if not opt.stamps: return
    stamp(6)
    if opt.dbg:
        e("s_memtime s[98:99]"); e("s_waitcnt lgkmcnt(0)"); e(f"s_sub_u32 s{S_T1}, s98, s100")
    else:
        e(f"s_getreg_b32 s{S_T1}, hwreg(HW_REG_XCC_ID)")
    e(f"v_writelane_b32 v{V_STAMP}, s{S_T1}, 7")
    e(f"s_lshl_b32 s{S_T0}, s2, 2")
    e(f"s_add_u32 s{S_T0}, s{S_T0}, s{S_W}")
    e(f"s_lshl_b32 s{S_T0}, s{S_T0}, 5")
    e(f"s_add_u32 s{S_T0}, s{S_T0}, {STAMP_OFF}")
    e(f"v_lshlrev_b32 v{V_T+1}, 2, v{V_LANE}")
    e("s_mov_b64 exec, 0xff")
    e(f"buffer_store_dword v{V_STAMP}, v{V_T+1}, s[{R_WS}:{R_WS+3}], s{S_T0} offen")
    e("s_mov_b64 exec, -1")

def stream_loop():
    e(f"s_waitcnt vmcnt({8*opt.D})")
    e("s_barrier")
    stamp(5)
    lab("L_loop")
    e(f"s_waitcnt vmcnt({8*(opt.D-1)})")
    e("s_barrier")
    for x in dma_head(): e(x)
    for d in dma("V"): e(d)
    e(f"s_mov_b32 m0, s{S_KWR}")
    e("s_nop 0")
    for d in dma("K"): e(d)
    for x in dma_tail(): e(x)
    e(f"s_add_u32 s{S_I}, s{S_I}, 1")
    e(f"s_cmp_lt_u32 s{S_I}, s{S_N}")
    e("s_cbranch_scc1 L_loop")
    write_stamps()
    e("s_endpgm")

def header(launches):
    src = open(f"cdna_kernels/{NAME}.s.ref").read().split("\n")
    hdr = [l for l in src if l.startswith(";") and "@launch" not in l]
    out.extend(hdr)
    out.extend(launches)
    out.append('.amdgcn_target "amdgcn-amd-amdhsa--gfx950"')
    out.append(".text")

def kernel_begin(name):
    out.extend([f".globl {name}", ".p2align 8", f".type {name},@function", f"{name}:"])

def kdesc(name, vgpr, accum, sgpr=102):
    out.extend(['.section .rodata,"a"', ".p2align 6", f".amdhsa_kernel {name}",
        f"  .amdhsa_next_free_vgpr {vgpr}", f"  .amdhsa_next_free_sgpr {sgpr}", f"  .amdhsa_accum_offset {accum}",
        "  .amdhsa_group_segment_fixed_size 0", "  .amdhsa_kernarg_size 64", "  .amdhsa_user_sgpr_count 2",
        "  .amdhsa_user_sgpr_kernarg_segment_ptr 1", "  .amdhsa_system_sgpr_workgroup_id_x 1", ".end_amdhsa_kernel"])

if __name__ == "__main__":
    main = NAME + "_kernel"
    if opt.mode == "stream":
        header(["; @launch grid=(256,1,1) block=(256,1,1) lds=%d" % LDS_BYTES])
        kernel_begin(main)
        prologue()
        stream_loop()
        lab("L_exit"); e("s_endpgm")
        kdesc(main, 320, 256)
    else:
        import gen_full
        gen_full.build(sys.modules[__name__])
    open(sys.argv[1], "w").write("\n".join(out) + "\n")
```
